```python
import torch

def _softmax(x, axis=-1):
    return torch.softmax(x, dim=axis)
def _gelu(x):
    return torch.nn.functional.gelu(x, approximate="tanh")
def _silu(x):
    return torch.nn.functional.silu(x)
def _sigmoid(x):
    return torch.sigmoid(x)
def _layernorm(x, axis=-1, eps=1e-5):
    m = x.mean(dim=axis, keepdim=True)
    v = x.var(dim=axis, keepdim=True, unbiased=False)
    return (x - m) / torch.sqrt(v + eps)
def _scatter_add(tgt, idx, src, axis=0):
    return tgt.clone().index_add_(axis, idx, src)
def _segment_sum(src, seg, n):
    out = torch.zeros((n,) + src.shape[1:], dtype=src.dtype)
    return out.index_add_(0, seg, src)
def _pad(x, pw):
    flat = tuple(v for pair in reversed(pw) for v in pair)
    return torch.nn.functional.pad(x, flat)

kernel_name = 'gated_mix__mha_block_cached__compressed_kv_cla__decode'

def setup_inputs():

    _w = (lambda a: (lambda t: t.to(torch.bfloat16) if t.is_floating_point() else t)(torch.as_tensor(a)))
    def _A_setup():
        B, Sq, D = 2, 1, 512
        H, Sk, Dh = 32, 8192, 128
        return {
            "x": _w((lambda *s: torch.randn(*s, dtype=torch.bfloat16) * 0.05)(B, Sq, D)),
            "k_cache": _w((lambda *s: torch.randn(*s, dtype=torch.bfloat16) * 6.4)(B, H, Sk, Dh)),
            "v_cache": _w((lambda *s: torch.randn(*s, dtype=torch.bfloat16) * 3.2)(B, H, Sk, Dh)),
            "wq": _w((lambda *s: torch.randn(*s, dtype=torch.bfloat16) * 6.4)(D, H * Dh) * (D ** -0.5)),
            "wo": _w((lambda *s: torch.randn(*s, dtype=torch.bfloat16) * 3.2)(H * Dh, D) * ((H * Dh) ** -0.5)),
        }
    _A_in = _A_setup()

    def _B_setup():
        B, H, Sq, Sk, D, M = 2, 32, 1, 8192, 128, 512
        Dc = 4 * D
        return {
            "x": _w((lambda *s: torch.randn(*s, dtype=torch.bfloat16) * 0.05)(B, Sq, M)),
            "c_kv": _w((lambda *s: torch.randn(*s, dtype=torch.bfloat16) * 1.6)(B, Sk, Dc)),
            "w_q": _w((lambda *s: torch.randn(*s, dtype=torch.bfloat16) * 6.4)(M, H, D) * (M ** -0.5)),
            "w_uk": _w((lambda *s: torch.randn(*s, dtype=torch.bfloat16) * 6.4)(Dc, H, D) * (Dc ** -0.5)),
            "w_uv": _w((lambda *s: torch.randn(*s, dtype=torch.bfloat16) * 1.6)(Dc, H, D) * (Dc ** -0.5)),
            "w_o": _w((lambda *s: torch.randn(*s, dtype=torch.bfloat16) * 1.6)(H, D, M) * ((H * D) ** -0.5)),
        }
    _B_in = _B_setup()

    return {
        "A_x": _A_in["x"],
        "A_k_cache": _A_in["k_cache"],
        "A_v_cache": _A_in["v_cache"],
        "A_wq": _A_in["wq"],
        "A_wo": _A_in["wo"],
        "B_x": _B_in["x"],
        "B_c_kv": _B_in["c_kv"],
        "B_w_q": _B_in["w_q"],
        "B_w_uk": _B_in["w_uk"],
        "B_w_uv": _B_in["w_uv"],
        "B_w_o": _B_in["w_o"],
        "gate_w": _w((lambda *s: torch.randn(*s, dtype=torch.bfloat16) * 0.1)(512) * 16.0),
    }

def reference(A_x, A_k_cache, A_v_cache, A_wq, A_wo, B_x, B_c_kv, B_w_q, B_w_uk, B_w_uv, B_w_o, gate_w):
    def _A_ref(x, k_cache, v_cache, wq, wo):
        B, Sq, D = x.shape
        H, Dh = 32, 128
        q = (lambda x, *d: x.permute(*d))((x @ wq).reshape(B, Sq, H, Dh), 0, 2, 1, 3)
        scores = torch.einsum("bhqd,bhkd->bhqk", q, k_cache) * (Dh ** -0.5)
        p = _softmax(scores, axis=-1)
        o = torch.einsum("bhqk,bhkd->bhqd", p, v_cache)
        return (lambda x, *d: x.permute(*d))(o, 0, 2, 1, 3).reshape(B, Sq, H * Dh) @ wo

    def _B_ref(x, c_kv, w_q, w_uk, w_uv, w_o):
        B, Sq, M = x.shape[0], x.shape[1], x.shape[2]
        Sk = c_kv.shape[1]
        H, D = w_q.shape[1], w_q.shape[2]
        q = torch.einsum("bqm,mhd->bhqd", x, w_q)
        k = torch.einsum("bkc,chd->bhkd", c_kv, w_uk)
        v = torch.einsum("bkc,chd->bhkd", c_kv, w_uv)
        scores = torch.einsum("bhqd,bhkd->bhqk", q, k) * (D ** -0.5)
        off = Sk - Sq
        qi = torch.arange(Sq)[:, None]
        kj = torch.arange(Sk)[None, :]
        cmask = kj <= (qi + off)
        scores = torch.where(cmask[None, None], scores, -1e9)
        p = _softmax(scores, axis=-1)
        ctx = torch.einsum("bhqk,bhkd->bhqd", p, v)
        return torch.einsum("bhqd,hdm->bqm", ctx, w_o)

    x = A_x
    g = _sigmoid((x * gate_w).sum(-1, keepdims=True))
    a = _A_ref(x, A_k_cache, A_v_cache, A_wq, A_wo)
    b = _B_ref(x, B_c_kv, B_w_q, B_w_uk, B_w_uv, B_w_o)
    return g * a + (1 - g) * b
```

```python
import re
TRANS = ('v_exp_f32', 'v_rcp_f32', 'v_log_f32', 'v_rsq_f32', 'v_sqrt_f32')
NOWRITE_S = ('s_cmp', 's_cbranch', 's_waitcnt', 's_nop', 's_barrier', 's_sleep', 's_branch', 's_setprio', 's_endpgm', 's_bitcmp', 's_setreg', 's_sethalt')
def regs(tok):
    tok = tok.strip().lstrip('-').strip('|')
    if tok.startswith('neg(') or tok.startswith('abs('): tok = tok[4:-1]
    m = re.fullmatch(r'([vs])(\d+)', tok)
    if m: return {(m.group(1), int(m.group(2)))}
    m = re.fullmatch(r'([vs])\[(\d+):(\d+)\]', tok)
    if m: return {(m.group(1), i) for i in range(int(m.group(2)), int(m.group(3)) + 1)}
    if tok in ('vcc', 'vcc_lo', 'vcc_hi'): return {('s', 'vcc')}
    if tok in ('exec', 'exec_lo', 'exec_hi'): return {('s', 'exec')}
    if tok == 'm0': return {('s', 'm0')}
    return set()
class I:
    def __init__(s, text):
        s.text = text; t = text.split(';')[0].strip()
        s.label = t[:-1] if t.endswith(':') else None
        s.op = None; s.w = set(); s.r = set(); s.kind = None; s.ws = 1; s.target = None
        if s.label or not t or t.startswith('.'):
            s.ws = 0; return
        p = t.split(None, 1); s.op = op = p[0]; rest = p[1] if len(p) > 1 else ''
        ops = [o.strip() for o in re.split(r',(?![^\[]*\])', rest)] if rest else []
        mods = ''
        if ops:
            lp = ops[-1].split(None, 1)
            ops[-1] = lp[0] if lp else ''
            mods = lp[1] if len(lp) > 1 else ''
        s.ops = ops; s.mods = mods
        R = [regs(o) for o in ops]
        U = lambda l: set().union(*l) if l else set()
        if op.startswith('v_mfma'):
            s.kind = 'mfma'; s.w = R[0]; s.ab = R[1] | R[2]; s.c = R[3]; s.r = s.ab | s.c
            s.lat = 8 if '16x16' in op else 12; s.war = 3 if '16x16' in op else 7
        elif op.startswith('v_'):
            s.kind = 'valu'; s.dpp = bool(re.search(r'row_|quad_perm|wave_', mods)); s.trans = op.startswith(TRANS)
            s.dot = op.startswith('v_dot'); s.perml = op.startswith('v_permlane'); s.rl = op.startswith(('v_readlane', 'v_readfirstlane'))
            s.sdwa = 'dst_sel' in mods and 'dst_sel:DWORD' not in mods
            s.w = set(R[0]); s.r = U(R[1:])
            if s.perml: s.w = R[0] | R[1]; s.r = R[0] | R[1]
            if op.startswith(('v_dot2c', 'v_fmac', 'v_mac', 'v_writelane')): s.r |= R[0]
            if op.startswith(('v_add_co', 'v_sub_co', 'v_addc', 'v_subb')): s.w |= R[1]; s.r = U(R[2:])
            if s.dpp: s.r |= R[0]
            s.lanesel = R[2] if op.startswith(('v_readlane', 'v_writelane')) else set()
            if s.dot: s.c = R[3] if len(R) > 3 else R[0]
        elif op.startswith(('buffer_', 'global_')):
            s.kind = 'vmem'; s.lds = bool(re.search(r'\blds\b', mods)); s.store = 'store' in op
            if s.lds: s.r = U(R) | {('s', 'm0')}
            elif 'load' in op: s.w = R[0]; s.r = U(R[1:])
            else:
                s.r = U(R)
                if 'atomic' in op and 'sc0' in mods: s.w = R[0]
            s.bigst = R[0] if (s.store and ('x3' in op or 'x4' in op)) else set()
        elif op.startswith('ds_'):
            s.kind = 'ds'
            if 'read' in op or 'rtn' in op or 'permute' in op: s.w = R[0]; s.r = U(R[1:])
            else: s.r = U(R)
        elif op.startswith('s_'):
            s.kind = 'salu'
            if op == 's_nop': s.ws = int(ops[0]) + 1
            if op.startswith(('s_cbranch', 's_branch')): s.target = ops[0]
            if not op.startswith(NOWRITE_S): s.w = R[0] if R else set(); s.r = U(R[1:])
            else: s.r = U(R)
        else: raise Exception('unknown ' + text)
def V(x): return {r for r in x if r[0] == 'v'}
def S(x): return {r for r in x if r[0] == 's'}
def need(p, c):
    n = 0
    if p.kind == 'valu':
        vw = V(p.w); sw = S(p.w)
        if vw:
            if c.kind == 'valu':
                if c.rl and vw & c.r: n = max(n, 1)
                if c.dpp and vw & c.r: n = max(n, 2)
                if c.perml and vw & c.r: n = max(n, 2)
                if p.trans and not c.trans and vw & c.r: n = max(n, 1)
                if p.sdwa and vw & c.r: n = max(n, 1)
                if p.dot and vw & (c.r | c.w):
                    if not (c.dot and c.op == p.op and not (vw & (c.r - c.c)) ): n = max(n, 3)
            elif c.kind == 'mfma':
                if vw & c.r: n = max(n, 3 if p.dot else 2)
            elif c.kind in ('vmem', 'ds'):
                if vw & c.r: n = max(n, 3 if p.dot else (1 if (p.trans or p.sdwa) else 0))
        if sw:
            if c.kind == 'valu':
                if sw & c.lanesel: n = max(n, 4)
                if sw & c.r: n = max(n, 2)
                if ('s', 'exec') in sw and c.dpp: n = max(n, 5)
            elif c.kind == 'vmem' and sw & c.r: n = max(n, 5)
    elif p.kind == 'mfma':
        if c.kind == 'mfma':
            if p.w & c.ab: n = max(n, p.lat)
            if p.w & c.c and not (p.w == c.c): n = max(n, p.lat)
            if p.w & c.w and not (p.w == c.c): n = max(n, p.lat)
        elif c.kind in ('valu', 'vmem', 'ds'):
            if p.w & (c.r | c.w): n = max(n, p.lat)
            if c.kind == 'valu' and p.c & c.w: n = max(n, p.war)
    elif p.kind == 'salu':
        if ('s', 'm0') in p.w and c.kind == 'vmem' and c.lds: n = max(n, 1)
    elif p.kind == 'vmem':
        if p.bigst and c.kind in ('valu', 'mfma') and p.bigst & c.w: n = max(n, 2)
    return n
def fix(lines):
    ins = [I(l) for l in lines]
    while True:
        lab = {x.label: i for i, x in enumerate(ins) if x.label}
        br = {}
        for i, x in enumerate(ins):
            if x.target: br.setdefault(lab[x.target], []).append(i)
        def preds(i):
            o = []
            if i > 0 and not (ins[i - 1].op in ('s_branch', 's_endpgm')): o.append(i - 1)
            if ins[i].label: o += br.get(i, [])
            return o
        changed = False
        for i, c in enumerate(ins):
            if c.kind in (None, 'salu'): continue
            worst = 0; st = [(p, 0) for p in preds(i)]; seen = set()
            while st:
                j, d = st.pop()
                if (j, d) in seen or d >= 13: continue
                seen.add((j, d)); p = ins[j]
                if p.kind: worst = max(worst, need(p, c) - d)
                for q in preds(j): st.append((q, d + p.ws))
            if worst > 0:
                ins.insert(i, I('s_nop %d' % (worst - 1))); changed = True; break
        if not changed: break
    return [x.text for x in ins]
```

```python
import sys
from asmlib import fix
KN = 'gated_mix__mha_block_cached__compressed_kv_cla__decode'
WSB = 0x100000
EPO = WSB; TIK = WSB + 0x1000; QAF = WSB + 0x4000; QA = WSB + 0x8000; CLF = WSB + 0x20000
PT = WSB + 0x40000; PTPH = 0x80000; YY = WSB + 0x140000; YPH = 0x40000; CLP = WSB + 0x200000
WSSZ = 0x800000
QP = 135168; QBP = QP + 2048; XB = QBP + 2048; SP = XB + 1024; CNT = SP + 2560; LDSSZ = 143360
PITCH = 1056
L2E = '0x3fb8aa3b'; SCALE = '0x3db504f3'
BOUND = 50000
def gen(NS=3, stamps=False, b2sel='j', bar0=True, G=2, dyn=0, prio=0, wf='', pf=0, gate=0):
    L = []; A = L.append
    cnt = [0]
    def lab(p):
        cnt[0] += 1; return 'L_%s%d' % (p, cnt[0])
    def srd(d, p, size):
        A('s_mov_b32 s%d, s%d' % (d, p)); A('s_mov_b32 s%d, s%d' % (d + 1, p + 1)); A('s_mov_b32 s%d, 0x%x' % (d + 2, size)); A('s_mov_b32 s%d, 0x20000' % (d + 3))
    def vr(a, n): return 'v[%d:%d]' % (a, a + n - 1)
    def stamp(k):
        if stamps:
            A('s_memrealtime s[28:29]'); A('s_waitcnt lgkmcnt(0)'); A('s_mov_b32 s%d, s28' % (90 + k))
    def finish():
        A('s_branch L_fin')
    def allred16(regs, op='v_add_f32'):
        for ror in (8, 4, 2, 1):
            for r in regs: A('%s_dpp v%d, v%d, v%d row_ror:%d row_mask:0xf bank_mask:0xf' % (op, r, r, r, ror))
    def allred_rows(r, t, op='v_add_f32'):
        for sw in (16, 32):
            A('v_mov_b32 v%d, v%d' % (t, r)); A('v_permlane%d_swap_b32 v%d, v%d' % (sw, r, t)); A('%s v%d, v%d, v%d' % (op, r, r, t))
    def round_scale(s0, n, t0):
        for ph in range(2):
            for i in range(0, n, 2): A('v_cvt_pk_bf16_f32 v%d, v%d, v%d' % (t0 + i // 2, s0 + i, s0 + i + 1))
            for i in range(0, n, 2):
                A('v_lshlrev_b32 v%d, 16, v%d' % (s0 + i, t0 + i // 2)); A('v_and_b32 v%d, 0xffff0000, v%d' % (s0 + i + 1, t0 + i // 2))
            if ph == 0:
                for i in range(n): A('v_mul_f32 v%d, s26, v%d' % (s0 + i, s0 + i))
    def masks(d, t):
        A('v_and_b32 v%d, 1, v4' % t); A('v_lshlrev_b32 v%d, 4, v%d' % (t, t)); A('v_mov_b32 v%d, 0xffff' % (t + 1)); A('v_lshlrev_b32 v%d, v%d, v%d' % (t, t, t + 1)); A('v_lshrrev_b32 v%d, 1, v4' % (t + 1))
        for r in range(4): A('v_cmp_eq_u32 vcc, %d, v%d' % (r, t + 1)); A('v_cndmask_b32 v%d, 0, v%d, vcc' % (d + r, t))
    def ldspoll(addr_v, target, sleep=1):
        l = lab('lp'); d = lab('lpd')
        A('s_mov_b32 s30, %d' % BOUND); A(l + ':')
        A('ds_read_b32 v28, v%d' % addr_v); A('s_waitcnt lgkmcnt(0)'); A('v_readfirstlane_b32 s31, v28')
        A('s_cmp_ge_u32 s31, %d' % target); A('s_cbranch_scc1 ' + d); A('s_sleep %d' % sleep)
        A('s_sub_u32 s30, s30, 1'); A('s_cmp_lg_u32 s30, 0'); A('s_cbranch_scc1 ' + l); A(d + ':')
    def hbar(off):
        A('v_mov_b32 v29, %d' % (CNT + off)); A('v_mov_b32 v28, 1'); A('s_waitcnt lgkmcnt(0)')
        A('s_mov_b64 exec, 1'); A('ds_add_u32 v29, v28'); A('s_mov_b64 exec, -1')
        ldspoll(29, 4)
    def gpoll(loads, check, sleep):
        l = lab('gp'); d = lab('gpd')
        A('s_mov_b32 s30, %d' % BOUND); A(l + ':')
        loads(); A('s_waitcnt vmcnt(0)'); check()
        A('s_cmp_eq_u64 vcc, -1'); A('s_cbranch_scc1 ' + d); A('s_sleep %d' % sleep)
        A('s_sub_u32 s30, s30, 1'); A('s_cmp_lg_u32 s30, 0'); A('s_cbranch_scc1 ' + l); A(d + ':')
    def tagcheck(tr):
        A('v_mov_b32 v28, v%d' % tr[0]); A('v_mov_b32 v29, v%d' % tr[0]); rest = tr[1:]
        while rest:
            a = rest[0]; b = rest[1] if len(rest) > 1 else rest[0]; rest = rest[2:]
            A('v_min3_u32 v28, v28, v%d, v%d' % (a, b)); A('v_max3_u32 v29, v29, v%d, v%d' % (a, b))
        A('v_cmp_eq_u32 s[24:25], s7, v28'); A('v_cmp_eq_u32 vcc, s7, v29'); A('s_and_b64 vcc, vcc, s[24:25]')
    WB = 128; XR = 112; SEL = 8; BR = 16; DD = 24
    def wload8k(sr, NL=32, base=WB, voff=5, fl=wf):
        for t in range(NL):
            A('buffer_load_dwordx4 %s, v%d, s[%d:%d], s24 offen %s' % (vr(base + 4 * t, 4), voff, sr, sr + 3, fl))
            if t < NL - 1: A('s_add_u32 s24, s24, 8192')
    def wload1k(sr):
        for t in range(32):
            A('buffer_load_dwordx4 %s, v6, s[%d:%d], s24 offen offset:%d %s' % (vr(WB + 4 * t, 4), sr, sr + 3, (t & 3) * 1024, wf))
            if (t & 3) == 3 and t < 31: A('s_add_u32 s24, s24, 4096')
    def gemv(NL, base=WB, after=None):
        for t in range(NL):
            if after is not None and t % 4 == 0: A('s_waitcnt vmcnt(%d)' % (after + NL - t - 4))
            b = BR + 4 * (t & 1)
            for r in range(4): A('v_perm_b32 v%d, v%d, v%d, v%d' % (b + r, XR + t // 2, XR + t // 2, SEL + 4 * (t & 1) + r))
            A('v_mfma_f32_16x16x32_bf16 %s, %s, %s, %s' % (vr(DD, 4), vr(base + 4 * t, 4), vr(b, 4), '0' if t == 0 else vr(DD, 4)))
    def d_to_x(src=DD):
        A('v_cvt_pk_bf16_f32 v28, v%d, v%d' % (src, src + 1)); A('v_cvt_pk_bf16_f32 v29, v%d, v%d' % (src + 2, src + 3))
        A('v_lshlrev_b32 v30, 6, v3'); A('v_lshl_add_u32 v31, v4, 1, v30'); A('v_add_u32 v31, v31, v7'); A('v_add_u32 v30, v30, v7')
        A('s_mov_b32 exec_lo, 0x00ff00ff'); A('s_mov_b32 exec_hi, 0x00ff00ff')
        A('ds_write_b16 v31, v28'); A('ds_write_b16_d16_hi v31, v28 offset:16'); A('ds_write_b16 v31, v29 offset:32'); A('ds_write_b16_d16_hi v31, v29 offset:48')
        A('s_mov_b64 exec, -1'); A('s_waitcnt lgkmcnt(0)')
        for k in range(4): A('ds_read_b128 %s, v30 offset:%d' % (vr(XR + 4 * k, 4), 16 * k))
        A('s_waitcnt lgkmcnt(0)')
    def d_to_lds_f32(base):
        A('v_lshlrev_b32 v30, 7, v3'); A('v_lshl_add_u32 v30, v4, 2, v30'); A('s_lshl_b32 s24, s63, 9'); A('s_add_u32 s24, s24, %d' % base); A('v_add_u32 v30, s24, v30')
        A('s_mov_b32 exec_lo, 0x00ff00ff'); A('s_mov_b32 exec_hi, 0x00ff00ff')
        for r in range(4): A('ds_write_b32 v30, v%d offset:%d' % (DD + r, 32 * r))
        A('s_mov_b64 exec, -1')
    def read_q(base, t0, q0):
        A('v_lshlrev_b32 v30, 5, v4'); A('v_add_u32 v30, %d, v30' % base)
        for w in range(4):
            for k in range(2): A('ds_read_b128 %s, v30 offset:%d' % (vr(t0 + 8 * w + 4 * k, 4), 512 * w + 16 * k))
        A('s_waitcnt lgkmcnt(0)')
        for i in range(8):
            A('v_add_f32 v%d, v%d, v%d' % (t0 + i, t0 + i, t0 + 8 + i)); A('v_add_f32 v%d, v%d, v%d' % (t0 + 16 + i, t0 + 16 + i, t0 + 24 + i))
        for i in range(8): A('v_add_f32 v%d, v%d, v%d' % (t0 + i, t0 + i, t0 + 16 + i))
        for i in range(4): A('v_cvt_pk_bf16_f32 v%d, v%d, v%d' % (q0 + i, t0 + 2 * i, t0 + 2 * i + 1))
    def publish_pt(d0, m, l, soff):
        A('v_mov_b32 v33, s7'); A('v_mov_b32 v35, s7'); A('v_mov_b32 v37, s7'); A('v_mov_b32 v39, s7'); A('v_mov_b32 v41, s7'); A('v_mov_b32 v43, s7')
        A('v_mov_b32 v32, v%d' % d0); A('v_mov_b32 v34, v%d' % (d0 + 1)); A('v_mov_b32 v36, v%d' % (d0 + 2)); A('v_mov_b32 v38, v%d' % (d0 + 3))
        A('v_mov_b32 v40, v%d' % m); A('v_mov_b32 v42, v%d' % l)
        A('v_lshlrev_b32 v44, 7, v3'); A('v_lshl_add_u32 v44, v4, 4, v44')
        A('s_mov_b32 exec_lo, 0x00ff00ff'); A('s_mov_b32 exec_hi, 0x00ff00ff')
        A('buffer_store_dwordx4 v[32:35], v44, s[16:19], %s offen sc1' % soff); A('buffer_store_dwordx4 v[36:39], v44, s[16:19], %s offen offset:512 sc1' % soff)
        A('s_mov_b64 exec, 1'); A('buffer_store_dwordx4 v[40:43], v44, s[16:19], %s offen offset:1024 sc1' % soff); A('s_mov_b64 exec, -1')

    A('s_cmp_ge_u32 s2, 256'); A('s_cbranch_scc1 L_end')
    A('s_load_dwordx16 s[32:47], s[0:1], 0'); A('s_load_dwordx8 s[48:55], s[0:1], 64'); A('s_load_dwordx4 s[56:59], s[0:1], 96'); A('s_load_dwordx2 s[60:61], s[0:1], 112')
    if stamps:
        A('s_memrealtime s[88:89]')
        for k in range(1, 10): A('s_mov_b32 s%d, 0' % (90 + k))
    A('v_lshrrev_b32 v1, 6, v0'); A('v_and_b32 v0, 63, v0'); A('v_readfirstlane_b32 s3, v1')
    A('v_lshlrev_b32 v2, 4, v0'); A('v_lshrrev_b32 v3, 4, v0'); A('v_and_b32 v4, 15, v0')
    A('s_and_b32 s24, s2, 7'); A('s_lshr_b32 s25, s2, 3')
    if G == 2:
        A('s_lshr_b32 s5, s24, 1'); A('s_lshl_b32 s5, s5, 3'); A('s_lshr_b32 s26, s25, 2'); A('s_add_u32 s5, s5, s26')
        A('s_bfe_u32 s4, s25, 0x10001')
        A('s_and_b32 s6, s25, 1'); A('s_lshl_b32 s6, s6, 1'); A('s_and_b32 s26, s24, 1'); A('s_add_u32 s6, s6, s26')
    elif G == 1:
        A('s_lshl_b32 s5, s24, 2'); A('s_lshr_b32 s26, s25, 3'); A('s_add_u32 s5, s5, s26'); A('s_bfe_u32 s4, s25, 0x10002'); A('s_and_b32 s6, s25, 3')
    elif G == 4:
        A('s_lshr_b32 s5, s24, 2'); A('s_lshl_b32 s5, s5, 4'); A('s_lshr_b32 s26, s25, 1'); A('s_add_u32 s5, s5, s26'); A('s_and_b32 s4, s25, 1'); A('s_and_b32 s6, s24, 3')
    A('s_lshl_b32 s62, s4, 5'); A('s_add_u32 s62, s62, s5')
    A('s_lshl_b32 s27, s4, 7'); A('s_add_u32 s27, s27, %d' % EPO)
    A('s_mov_b32 s26, %s' % SCALE)
    A('s_cmp_ge_u32 s3, 4')
    A('s_waitcnt lgkmcnt(0)')
    srd(16, 60, WSSZ)
    A('buffer_load_dword v1, off, s[16:19], s27 sc0 sc1')
    A('s_cbranch_scc1 L_helper')

    srd(8, 34, 0x8000000); srd(12, 36, 0x8000000)
    A('s_lshl_b32 s64, s62, 21'); A('s_lshl_b32 s24, s6, 2'); A('s_add_u32 s24, s24, s3'); A('s_lshl_b32 s24, s24, 17'); A('s_add_u32 s65, s64, s24')
    A('s_add_u32 s66, s65, 0x20000')
    SL = 64
    def issueK(s):
        for i in range(4): A('buffer_load_dwordx4 %s, v2, s[8:11], s%d offen offset:%d nt' % (vr(SL + 32 * s + 4 * i, 4), 68 + s, 1024 * i))
    def issueV(s):
        for i in range(4): A('buffer_load_dwordx4 %s, v2, s[12:15], s%d offen offset:%d nt' % (vr(SL + 32 * s + 16 + 4 * i, 4), 68 + s, 1024 * i))
    def nextoff(s):
        A('s_cmp_lt_u32 s65, s66'); A('s_cselect_b32 s%d, s65, 0x8000000' % (68 + s)); A('s_add_u32 s65, s65, 4096')
    for s in range(NS):
        nextoff(s); issueK(s); issueV(s)
        if s == 0 and bar0: A('s_barrier')
    A('s_cmp_lg_u32 s3, 0'); A('s_cbranch_scc1 L_noz')
    A('v_mov_b32 v28, %d' % CNT); A('v_lshl_add_u32 v28, v4, 2, v28'); A('v_mov_b32 v29, 0'); A('ds_write_b32 v28, v29'); A('L_noz:')
    masks(5, 17)
    A('v_mov_b32 v19, 0xf149f2ca'); A('v_mov_b32 v24, 0')
    for r in range(4): A('v_mov_b32 v%d, 0' % (28 + r))
    A('s_waitcnt vmcnt(%d) lgkmcnt(0)' % (8 * NS)); A('v_readfirstlane_b32 s7, v1'); A('s_add_u32 s7, s7, 0x9e3779b1')
    A('s_barrier')
    stamp(1)
    A('v_lshlrev_b32 v21, 5, v4'); A('v_add_u32 v21, %d, v21' % QP)
    for w in range(4):
        for k in range(2): A('ds_read_b128 %s, v21 offset:%d' % (vr(32 + 8 * w + 4 * k, 4), 512 * w + 16 * k))
    A('s_waitcnt lgkmcnt(0)')
    for i in range(8):
        A('v_add_f32 v%d, v%d, v%d' % (32 + i, 32 + i, 40 + i)); A('v_add_f32 v%d, v%d, v%d' % (48 + i, 48 + i, 56 + i))
    for i in range(8): A('v_add_f32 v%d, v%d, v%d' % (32 + i, 32 + i, 48 + i))
    for i in range(4): A('v_cvt_pk_bf16_f32 v%d, v%d, v%d' % (9 + i, 32 + 2 * i, 33 + 2 * i))
    if prio: A('s_setprio %d' % prio)
    A('L_loop:')
    for s in range(NS):
        K = SL + 32 * s; Vv = K + 16
        A('s_cmp_ge_u32 s%d, 0x8000000' % (68 + s)); A('s_cbranch_scc1 L_sdone')
        A('s_waitcnt vmcnt(%d)' % (8 * NS - 4))
        for j in range(4):
            for i in range(4): A('v_dot2_f32_bf16 v%d, v%d, v%d, %s' % (13 + i, K + 4 * i + j, 9 + j, '0' if j == 0 else 'v%d' % (13 + i)))
        nextoff(s); issueK(s)
        allred16([13, 14, 15, 16])
        round_scale(13, 4, 17)
        A('v_max3_f32 v20, v13, v14, v19'); A('v_max3_f32 v20, v15, v16, v20')
        allred_rows(20, 21, 'v_max_f32')
        A('v_sub_f32 v22, v19, v20'); A('v_mul_f32 v23, %s, v20' % L2E); A('v_mul_f32 v22, %s, v22' % L2E); A('v_mov_b32 v19, v20'); A('v_exp_f32 v22, v22')
        A('v_mov_b32 v21, %s' % L2E)
        for i in range(4): A('v_fma_f32 v%d, v%d, v21, -v23' % (13 + i, 13 + i))
        for i in range(4): A('v_exp_f32 v%d, v%d' % (13 + i, 13 + i))
        for r in range(4): A('v_mul_f32 v%d, v22, v%d' % (28 + r, 28 + r))
        for i in range(4): A('v_cvt_pk_bf16_f32 v%d, v%d, v%d' % (48 + i, 13 + i, 13 + i))
        A('v_add_f32 v17, v13, v14'); A('v_add_f32 v18, v15, v16')
        for i in range(4):
            for r in range(4): A('v_and_b32 v%d, v%d, v%d' % (32 + 4 * i + r, 48 + i, 5 + r))
        A('v_add_f32 v17, v17, v18'); A('v_fma_f32 v24, v24, v22, v17')
        A('s_waitcnt vmcnt(%d)' % (8 * NS - 4))
        for i in range(4): A('v_mfma_f32_16x16x32_bf16 v[28:31], %s, %s, v[28:31]' % (vr(Vv + 4 * i, 4), vr(32 + 4 * i, 4)))
        issueV(s)
    A('s_branch L_loop')
    A('L_sdone:')
    stamp(2)
    allred_rows(24, 21)
    A('v_lshlrev_b32 v21, 7, v3'); A('v_and_b32 v22, 7, v4'); A('v_lshl_add_u32 v21, v22, 4, v21'); A('v_add_u32 v21, %d, v21' % SP)
    A('s_mul_i32 s24, s3, 640'); A('v_add_u32 v22, s24, v21'); A('s_add_u32 s24, s24, %d' % (SP + 512)); A('v_mov_b32 v23, s24'); A('v_mov_b32 v25, v24'); A('v_mov_b32 v24, v19')
    A('s_mov_b32 exec_lo, 0x00ff00ff'); A('s_mov_b32 exec_hi, 0x00ff00ff'); A('ds_write_b128 v22, v[28:31]')
    A('s_mov_b64 exec, 1'); A('ds_write_b64 v23, v[24:25]'); A('v_mov_b32 v22, %d' % (CNT + 8)); A('v_mov_b32 v23, 1'); A('s_waitcnt lgkmcnt(0)')
    A('ds_add_rtn_u32 v23, v22, v23'); A('s_waitcnt lgkmcnt(0)'); A('s_mov_b64 exec, -1'); A('v_readfirstlane_b32 s24, v23')
    A('s_cmp_lg_u32 s24, 3'); A('s_cbranch_scc1 L_fin')
    A('v_mov_b32 v22, %d' % (SP + 512))
    for w in range(4): A('ds_read_b64 %s, v22 offset:%d' % (vr(48 + 2 * w, 2), 640 * w))
    for w in range(4): A('ds_read_b128 %s, v21 offset:%d' % (vr(32 + 4 * w, 4), 640 * w))
    A('s_waitcnt lgkmcnt(4)')
    A('v_max3_f32 v19, v48, v50, v52'); A('v_max_f32 v19, v19, v54')
    for w in range(4): A('v_sub_f32 v%d, v%d, v19' % (48 + 2 * w, 48 + 2 * w))
    for w in range(4): A('v_mul_f32 v%d, %s, v%d' % (48 + 2 * w, L2E, 48 + 2 * w))
    for w in range(4): A('v_exp_f32 v%d, v%d' % (48 + 2 * w, 48 + 2 * w))
    A('v_mul_f32 v24, v48, v49')
    for w in range(1, 4): A('v_fma_f32 v24, v%d, v%d, v24' % (48 + 2 * w, 49 + 2 * w))
    A('s_waitcnt lgkmcnt(0)')
    for r in range(4): A('v_mul_f32 v%d, v48, v%d' % (28 + r, 32 + r))
    for w in range(1, 4):
        for r in range(4): A('v_fma_f32 v%d, v%d, v%d, v%d' % (28 + r, 48 + 2 * w, 32 + 4 * w + r, 28 + r))
    A('s_lshl_b32 s24, s62, 2'); A('s_add_u32 s24, s24, s6'); A('s_lshl_b32 s24, s24, 11'); A('s_add_u32 s24, s24, %d' % (PT + PTPH))
    publish_pt(28, 19, 24, 's24')
    finish()

    A('L_helper:')
    A('s_sub_u32 s63, s3, 4')
    srd(8, 38, 0x400000); srd(20, 32, 2048)
    A('v_lshlrev_b32 v5, 18, v3'); A('v_lshl_add_u32 v5, v4, 4, v5'); A('v_lshlrev_b32 v28, 6, v3')
    A('s_lshl_b32 s25, s4, 10'); A('s_lshl_b32 s24, s63, 8'); A('s_add_u32 s25, s25, s24')
    for k in range(4): A('buffer_load_dwordx4 %s, v28, s[20:23], s25 offen offset:%d' % (vr(XR + 4 * k, 4), 16 * k))
    A('s_lshl_b32 s64, s63, 20'); A('s_lshl_b32 s65, s5, 8'); A('s_add_u32 s64, s64, s65'); A('s_mov_b32 s24, s64')
    wload8k(8)
    npf = 0
    if pf:
        A('s_lshl_b32 s24, s2, 2'); A('s_add_u32 s24, s24, s63'); A('s_lshl_b32 s24, s24, 12')
        for p in (46, 48, 50, 52, 40)[:pf]:
            srd(12, p, 0x400000)
            for i in range(4): A('buffer_load_dwordx4 v[48:51], v2, s[12:15], s24 offen offset:%d' % (1024 * i)); npf += 1
    if bar0: A('s_barrier')
    masks(BR, 28)
    A('v_mov_b32 v28, 0x0c0c0c0c'); A('s_mov_b32 s24, 0x01000100'); A('s_mov_b32 s25, 0x03020302')
    for r in range(4): A('v_bfi_b32 v%d, v%d, s24, v28' % (SEL + r, BR + r)); A('v_bfi_b32 v%d, v%d, s25, v28' % (SEL + 4 + r, BR + r))
    A('v_lshlrev_b32 v6, 15, v3'); A('v_lshl_add_u32 v6, v4, 4, v6')
    A('s_lshl_b32 s24, s63, 8'); A('s_add_u32 s24, s24, %d' % XB); A('v_mov_b32 v7, s24')
    srd(12, 46, 0x400000)
    gemv(32, after=npf)
    A('v_readfirstlane_b32 s7, v1'); A('s_add_u32 s7, s7, 0x9e3779b1')
    d_to_lds_f32(QP)
    A('s_mov_b32 s24, s64'); wload8k(12)
    if not gate: A('s_waitcnt lgkmcnt(0)'); A('s_barrier')
    stamp(1)
    srd(8, 48, 0x400000)
    A('v_lshlrev_b32 v31, 16, v3'); A('v_lshl_add_u32 v31, v4, 4, v31')
    A('s_lshl_b32 s24, s6, 2'); A('s_add_u32 s24, s24, s63'); A('s_lshl_b32 s66, s24, 6'); A('s_lshl_b32 s24, s24, 18'); A('s_add_u32 s24, s24, s65')
    wload8k(8, NL=8, base=48, voff=31)
    if gate: A('s_waitcnt vmcnt(0) lgkmcnt(0)'); A('s_barrier')
    gemv(32, after=8)
    stamp(7)
    d_to_lds_f32(QBP)
    hbar(0)
    stamp(8)
    read_q(QBP, 80, 44)
    A('s_waitcnt vmcnt(0)')
    stamp(9)
    for j in range(4):
        for t in range(8): A('v_dot2_f32_bf16 v%d, v%d, v%d, %s' % (32 + t, 48 + 4 * t + j, 44 + j, '0' if j == 0 else 'v%d' % (32 + t)))
    allred16(list(range(32, 40)))
    for i in range(4): A('v_cvt_pk_bf16_f32 v%d, v%d, v%d' % (40 + i, 32 + 2 * i, 33 + 2 * i))
    A('s_lshl_b32 s24, s62, 10'); A('s_add_u32 s24, s24, s66'); A('s_add_u32 s24, s24, %d' % QA); A('v_lshlrev_b32 v28, 4, v3')
    A('s_mov_b32 exec_lo, 0x00010001'); A('s_mov_b32 exec_hi, 0x00010001')
    A('buffer_store_dwordx4 v[40:43], v28, s[16:19], s24 offen sc1')
    A('s_lshl_b32 s24, s62, 6'); A('s_lshr_b32 s25, s66, 4'); A('s_add_u32 s24, s24, s25'); A('s_add_u32 s24, s24, %d' % QAF)
    A('v_mov_b32 v28, s7'); A('s_mov_b64 exec, 1'); A('s_waitcnt vmcnt(0)')
    A('buffer_store_dword v28, off, s[16:19], s24 sc1'); A('s_mov_b64 exec, -1')
    stamp(2)
    if b2sel == 'j':
        A('s_cmp_ge_u32 s6, 2'); A('s_cbranch_scc1 L_roles'); A('s_and_b32 s67, s6, 1')
    else:
        A('s_bitcmp1_b32 s6, 0'); A('s_cbranch_scc1 L_roles'); A('s_lshr_b32 s67, s6, 1')
    A('s_lshl_b32 s24, s5, 1'); A('s_add_u32 s67, s67, s24')
    srd(8, 44, 0x1000000)
    A('s_lshl_b32 s24, s4, 23'); A('s_lshl_b32 s25, s67, 17'); A('s_add_u32 s24, s24, s25'); A('s_lshl_b32 s25, s63, 15'); A('s_add_u32 s24, s24, s25')
    A('s_mul_i32 s25, s63, %d' % (32 * PITCH)); A('s_mov_b32 m0, s25')
    for r in range(32):
        A('buffer_load_dwordx4 v2, s[8:11], s24 offen offset:%d nt lds' % ((r & 3) * 1024))
        if r < 31:
            A('s_add_u32 m0, m0, %d' % (PITCH - 1024 if (r & 3) != 3 else PITCH + 3072))
            if (r & 3) == 3: A('s_add_u32 s24, s24, 4096')
    A('s_and_b32 s68, s63, 1'); A('s_lshr_b32 s69, s63, 1')
    A('s_lshl_b32 s70, s68, 4'); A('s_lshl_b32 s24, s4, 5'); A('s_add_u32 s70, s70, s24')
    A('s_lshl_b32 s71, s70, 6'); A('s_add_u32 s71, s71, %d' % QAF)
    gpoll(lambda: A('buffer_load_dwordx4 v[32:35], v2, s[16:19], s71 offen sc1'), lambda: tagcheck([32, 33, 34, 35]), 8)
    A('v_lshlrev_b32 v30, 10, v4'); A('v_lshl_add_u32 v30, v3, 4, v30'); A('s_lshl_b32 s24, s70, 10'); A('s_add_u32 s24, s24, %d' % QA)
    for ks in range(16): A('buffer_load_dwordx4 %s, v30, s[16:19], s24 offen offset:%d sc1' % (vr(128 + 4 * ks, 4), 64 * ks))
    hbar(4)
    stamp(3)
    A('v_mul_u32_u24 v32, %d, v4' % PITCH); A('v_lshl_add_u32 v32, v3, 4, v32'); A('v_add_u32 v33, %d, v32' % (64 * PITCH))
    A('s_waitcnt vmcnt(0)')
    groups = [(T, kq) for T in range(8) for kq in range(4)]
    def rdS(gi):
        T, kq = groups[gi]
        for i in range(4): A('ds_read_b128 %s, v%d offset:%d' % (vr(192 + 16 * (gi % 3) + 4 * i, 4), 32 + (T >> 2), (T & 3) * 16 * PITCH + 64 * (4 * kq + i)))
    rdS(0); rdS(1)
    for gi, (T, kq) in enumerate(groups):
        if gi + 2 < len(groups): rdS(gi + 2)
        A('s_waitcnt lgkmcnt(%d)' % (4 * min(2, len(groups) - 1 - gi)))
        for i in range(4):
            ks = 4 * kq + i
            A('v_mfma_f32_16x16x32_bf16 %s, %s, %s, %s' % (vr(48 + 4 * T, 4), vr(192 + 16 * (gi % 3) + 4 * i, 4), vr(128 + 4 * ks, 4), '0' if ks == 0 else vr(48 + 4 * T, 4)))
    round_scale(48, 32, 80)
    A('v_max3_f32 v34, v48, v49, v50')
    for i in range(51, 79, 2): A('v_max3_f32 v34, v34, v%d, v%d' % (i, i + 1))
    A('v_max_f32 v34, v34, v79')
    allred_rows(34, 35, 'v_max_f32')
    A('v_mul_f32 v35, %s, v34' % L2E); A('v_mov_b32 v36, %s' % L2E)
    for i in range(32): A('v_fma_f32 v%d, v%d, v36, -v35' % (48 + i, 48 + i))
    for i in range(32): A('v_exp_f32 v%d, v%d' % (48 + i, 48 + i))
    for i in range(16): A('v_cvt_pk_bf16_f32 v%d, v%d, v%d' % (80 + i, 48 + 2 * i, 49 + 2 * i))
    for n in (16, 8, 4, 2, 1):
        for i in range(n): A('v_add_f32 v%d, v%d, v%d' % (48 + i, 48 + i, 48 + n + i))
    allred_rows(48, 35)
    A('v_lshrrev_b32 v32, 2, v4'); A('v_lshl_add_u32 v32, v3, 2, v32'); A('v_mul_u32_u24 v32, %d, v32' % PITCH); A('v_and_b32 v33, 3, v4'); A('v_lshl_add_u32 v32, v33, 4, v32')
    A('s_lshl_b32 s24, s69, 9'); A('v_add_u32 v32, s24, v32'); A('v_add_u32 v33, %d, v32' % (64 * PITCH))
    A('v_lshlrev_b32 v36, 16, v4'); A('v_lshl_add_u32 v36, v3, 4, v36')
    A('s_lshl_b32 s72, s70, 16'); A('s_lshl_b32 s24, s69, 15'); A('s_add_u32 s72, s72, s24'); A('s_lshl_b32 s24, s67, 8'); A('s_add_u32 s72, s72, s24'); A('s_add_u32 s72, s72, %d' % CLP); A('s_add_u32 s73, s72, 16384')
    g2 = [(P, up, uh) for P in range(8) for up in range(2) for uh in range(2)]
    def rdP(gi):
        P, up, uh = g2[gi]
        for i in range(4):
            A('ds_read_b64_tr_b16 %s, v%d offset:%d' % (vr(192 + 8 * (gi % 3) + 2 * i, 2), 32 + uh, i * 16 * PITCH + 64 * P + 8 * up))
    rdP(0); rdP(1)
    for gi, (P, up, uh) in enumerate(g2):
        if gi + 2 < len(g2): rdP(gi + 2)
        A('s_waitcnt lgkmcnt(%d)' % (4 * min(2, len(g2) - 1 - gi)))
        acc = 96 + 8 * (P & 1) + 4 * up
        for i in range(2):
            u = 2 * uh + i
            A('v_mfma_f32_16x16x32_bf16 %s, %s, %s, %s' % (vr(acc, 4), vr(192 + 8 * (gi % 3) + 4 * i, 4), vr(80 + 4 * u, 4), '0' if u == 0 else vr(acc, 4)))
        def flush(Pp):
            a = 96 + 8 * (Pp & 1); o = 64 + 4 * (Pp & 1)
            for i in range(4): A('v_cvt_pk_bf16_f32 v%d, v%d, v%d' % (o + i, a + 2 * i, a + 2 * i + 1))
            A('buffer_store_dwordx4 %s, v36, s[16:19], s%d offen offset:%d sc1' % (vr(o, 4), 72 + (Pp >> 2), 64 * (Pp & 3)))
        if up == 0 and uh == 1 and P > 0: flush(P - 1)
    flush(7)
    A('v_mov_b32 v40, v34'); A('v_mov_b32 v41, s7'); A('v_mov_b32 v42, v48'); A('v_mov_b32 v43, s7'); A('v_lshlrev_b32 v36, 11, v4')
    A('s_lshl_b32 s24, s70, 11'); A('s_lshl_b32 s25, s69, 10'); A('s_add_u32 s24, s24, s25'); A('s_lshl_b32 s25, s67, 4'); A('s_add_u32 s24, s24, s25'); A('s_add_u32 s24, s24, %d' % CLF)
    A('s_mov_b64 exec, 0xffff'); A('s_waitcnt vmcnt(0)')
    A('buffer_store_dwordx4 v[40:43], v36, s[16:19], s24 offen sc1'); A('s_mov_b64 exec, -1')
    stamp(4)
    A('L_roles:')
    A('s_cmp_eq_u32 s63, 0'); A('s_cbranch_scc1 L_final'); A('s_cmp_eq_u32 s63, 2'); A('s_cbranch_scc1 L_tail'); A('s_cmp_eq_u32 s63, 3'); A('s_cbranch_scc1 L_fin')
    srd(8, 50, 0x400000)
    A('s_lshl_b32 s24, s6, 20'); A('s_add_u32 s24, s24, s65'); wload8k(8)
    A('s_lshl_b32 s71, s62, 11'); A('s_lshr_b32 s24, s6, 1'); A('s_lshl_b32 s24, s24, 10'); A('s_add_u32 s71, s71, s24'); A('s_add_u32 s71, s71, %d' % CLF)
    gpoll(lambda: A('buffer_load_dwordx4 v[32:35], v2, s[16:19], s71 offen sc1'), lambda: tagcheck([33, 35]), 16)
    stamp(5)
    A('v_lshlrev_b32 v30, 12, v3'); A('v_lshl_add_u32 v30, v4, 4, v30')
    A('s_lshl_b32 s24, s62, 2'); A('s_add_u32 s74, s24, s6'); A('s_lshl_b32 s24, s74, 14'); A('s_add_u32 s24, s24, %d' % CLP)
    for t in range(16): A('buffer_load_dwordx4 %s, v30, s[16:19], s24 offen offset:%d sc1' % (vr(48 + 4 * t, 4), 256 * t))
    A('v_mov_b32 v36, v32'); allred16([36], 'v_max_f32'); allred_rows(36, 37, 'v_max_f32')
    A('v_sub_f32 v32, v32, v36'); A('v_mul_f32 v32, %s, v32' % L2E); A('v_exp_f32 v32, v32'); A('v_mul_f32 v36, v32, v34')
    allred16([36]); allred_rows(36, 37)
    A('v_rcp_f32 v36, v36'); A('v_mul_f32 v32, v32, v36'); A('v_cvt_pk_bf16_f32 v32, v32, v32')
    A('v_lshl_add_u32 v30, v0, 1, v7'); A('ds_write_b16 v30, v32'); A('v_lshl_add_u32 v30, v3, 5, v7'); A('s_waitcnt lgkmcnt(0)')
    for k in range(2): A('ds_read_b128 %s, v30 offset:%d' % (vr(XR + 4 * k, 4), 16 * k))
    A('s_waitcnt lgkmcnt(0)')
    gemv(16, base=48, after=0)
    d_to_x()
    gemv(32)
    A('v_mov_b32 v45, 0'); A('v_mov_b32 v46, 0x3e800000'); A('s_lshl_b32 s24, s74, 11'); A('s_add_u32 s24, s24, %d' % PT)
    publish_pt(DD, 45, 46, 's24')
    A('v_mov_b32 v29, %d' % (CNT + 12)); A('v_mov_b32 v28, 4'); A('s_mov_b64 exec, 1'); A('ds_add_u32 v29, v28'); A('s_mov_b64 exec, -1')
    stamp(6)
    finish()
    A('L_tail:')
    srd(8, 52, 0x400000)
    A('s_mov_b32 s75, 0'); A('s_lshl_b32 s76, s62, 13'); A('s_add_u32 s76, s76, %d' % PT)
    A('s_lshl_b32 s77, s4, 2'); A('s_add_u32 s77, s77, s6'); A('s_lshl_b32 s77, s77, 5'); A('s_add_u32 s77, s77, s5'); A('s_lshl_b32 s77, s77, 10'); A('s_add_u32 s77, s77, %d' % YY)
    A('v_lshlrev_b32 v47, 7, v3'); A('v_and_b32 v28, 7, v4'); A('v_lshl_add_u32 v47, v28, 4, v47'); A('v_mov_b32 v46, 0'); A('s_add_u32 s78, s76, 4096')
    A('v_lshlrev_b32 v45, 8, v3'); A('v_lshl_add_u32 v45, v4, 3, v45'); A('v_mov_b32 v44, %d' % (CNT + 12))
    A('L_tph:')
    A('s_lshl_b32 s24, s5, 17'); A('s_lshl_b32 s25, s6, 8'); A('s_add_u32 s24, s24, s25'); wload1k(8)
    ldspoll(44, 4, 4)
    def gl():
        for m in range(4):
            so = 76 if m < 2 else 78; o = 2048 * (m & 1)
            A('buffer_load_dwordx4 %s, v47, s[16:19], s%d offen offset:%d sc1' % (vr(48 + 12 * m, 4), so, o))
            A('buffer_load_dwordx4 %s, v47, s[16:19], s%d offen offset:%d sc1' % (vr(52 + 12 * m, 4), so, o + 512))
            A('buffer_load_dwordx4 %s, v46, s[16:19], s%d offen offset:%d sc1' % (vr(56 + 12 * m, 4), so, o + 1024))
    gpoll(gl, lambda: tagcheck(list(range(49, 96, 2))), 4)
    A('v_max3_f32 v32, v56, v68, v80'); A('v_max_f32 v32, v32, v92')
    for m in range(4): A('v_sub_f32 v%d, v%d, v32' % (56 + 12 * m, 56 + 12 * m))
    for m in range(4): A('v_mul_f32 v%d, %s, v%d' % (56 + 12 * m, L2E, 56 + 12 * m))
    for m in range(4): A('v_exp_f32 v%d, v%d' % (56 + 12 * m, 56 + 12 * m))
    A('v_mul_f32 v32, v56, v58')
    for m in range(1, 4): A('v_fma_f32 v32, v%d, v%d, v32' % (56 + 12 * m, 58 + 12 * m))
    A('v_rcp_f32 v32, v32')
    for r in range(4): A('v_mul_f32 v%d, v56, v%d' % (36 + r, 48 + 2 * r))
    for m in range(1, 4):
        for r in range(4): A('v_fma_f32 v%d, v%d, v%d, v%d' % (36 + r, 56 + 12 * m, 48 + 12 * m + 2 * r, 36 + r))
    for r in range(4): A('v_mul_f32 v%d, v32, v%d' % (36 + r, 36 + r))
    d_to_x(36)
    gemv(32)
    for r in range(4): A('v_mov_b32 v%d, s7' % (33 + 2 * r))
    for r in range(4): A('v_mov_b32 v%d, v%d' % (32 + 2 * r, DD + r))
    A('s_mov_b32 exec_lo, 0x00ff00ff'); A('s_mov_b32 exec_hi, 0x00ff00ff')
    for r in range(4): A('buffer_store_dwordx2 %s, v45, s[16:19], s77 offen offset:%d sc1' % (vr(32 + 2 * r, 2), 64 * r))
    A('s_mov_b64 exec, -1')
    A('s_cmp_lg_u32 s75, 0'); A('s_cbranch_scc1 L_tailend')
    stamp(5)
    A('v_mov_b32 v44, %d' % (CNT + 8)); A('s_mov_b32 s75, 1'); A('s_mov_b32 s8, s40'); A('s_mov_b32 s9, s41'); A('s_add_u32 s76, s76, %d' % PTPH); A('s_add_u32 s78, s78, %d' % PTPH); A('s_add_u32 s77, s77, %d' % YPH)
    A('s_branch L_tph')
    A('L_tailend:')
    stamp(6)
    finish()
    A('L_final:')
    srd(8, 54, 1024); A('s_lshl_b32 s25, s4, 10')
    A('buffer_load_dwordx4 v[32:35], v2, s[20:23], s25 offen'); A('buffer_load_dwordx4 v[36:39], v2, s[8:11], 0 offen')
    A('s_lshl_b32 s77, s4, 2'); A('s_add_u32 s77, s77, s6'); A('s_lshl_b32 s77, s77, 15'); A('s_lshl_b32 s24, s5, 5'); A('s_add_u32 s77, s77, s24'); A('s_add_u32 s77, s77, %d' % YY)
    A('v_lshrrev_b32 v47, 1, v0'); A('v_lshlrev_b32 v47, 10, v47'); A('v_and_b32 v28, 1, v0'); A('v_lshl_add_u32 v47, v28, 4, v47'); A('v_mov_b32 v44, %d' % (CNT + 12)); A('s_mov_b32 s75, 0')
    A('s_waitcnt vmcnt(0)')
    for i in range(4):
        A('v_lshlrev_b32 v%d, 16, v%d' % (48 + 2 * i, 32 + i)); A('v_and_b32 v%d, 0xffff0000, v%d' % (49 + 2 * i, 32 + i))
        A('v_lshlrev_b32 v%d, 16, v%d' % (56 + 2 * i, 36 + i)); A('v_and_b32 v%d, 0xffff0000, v%d' % (57 + 2 * i, 36 + i))
    for i in range(8): A('v_mul_f32 v%d, v%d, v%d' % (48 + i, 48 + i, 56 + i))
    for i in range(4): A('v_cvt_pk_bf16_f32 v%d, v%d, v%d' % (56 + i, 48 + 2 * i, 49 + 2 * i))
    for i in range(4): A('v_lshlrev_b32 v%d, 16, v%d' % (48 + 2 * i, 56 + i)); A('v_and_b32 v%d, 0xffff0000, v%d' % (49 + 2 * i, 56 + i))
    for n in (4, 2, 1):
        for i in range(n): A('v_add_f32 v%d, v%d, v%d' % (48 + i, 48 + i, 48 + n + i))
    allred16([48]); allred_rows(48, 49)
    A('v_cvt_pk_bf16_f32 v48, v48, v48'); A('v_lshlrev_b32 v48, 16, v48'); A('v_mul_f32 v48, 0xbfb8aa3b, v48'); A('v_exp_f32 v48, v48'); A('v_add_f32 v48, 1.0, v48'); A('v_rcp_f32 v48, v48')
    A('v_cvt_pk_bf16_f32 v48, v48, v48'); A('v_lshlrev_b32 v40, 16, v48'); A('v_sub_f32 v41, 1.0, v40'); A('v_cvt_pk_bf16_f32 v41, v41, v41'); A('v_lshlrev_b32 v41, 16, v41')
    A('L_fph:')
    ldspoll(44, 4, 4)
    gpoll(lambda: A('buffer_load_dwordx4 v[32:35], v47, s[16:19], s77 offen sc1'), lambda: tagcheck([33, 35]), 4)
    for ror in (8, 4, 2):
        for r in (32, 34): A('v_add_f32_dpp v%d, v%d, v%d row_ror:%d row_mask:0xf bank_mask:0xf' % (r, r, r, ror))
    allred_rows(32, 36); allred_rows(34, 36)
    A('v_cvt_pk_bf16_f32 v32, v32, v34'); A('v_and_b32 v33, 0xffff0000, v32'); A('v_lshlrev_b32 v32, 16, v32')
    A('v_mul_f32 v32, v41, v32'); A('v_mul_f32 v33, v41, v33'); A('v_cvt_pk_bf16_f32 v32, v32, v33'); A('v_and_b32 v33, 0xffff0000, v32'); A('v_lshlrev_b32 v32, 16, v32')
    A('s_cmp_lg_u32 s75, 0'); A('s_cbranch_scc1 L_fout')
    stamp(5)
    A('v_mov_b32 v42, v32'); A('v_mov_b32 v43, v33'); A('v_mov_b32 v41, v40'); A('v_mov_b32 v44, %d' % (CNT + 8)); A('s_mov_b32 s75, 1'); A('s_add_u32 s77, s77, %d' % YPH); A('s_branch L_fph')
    A('L_fout:')
    A('v_add_f32 v32, v32, v42'); A('v_add_f32 v33, v33, v43'); A('v_cvt_pk_bf16_f32 v32, v32, v33')
    srd(8, 56, 2048)
    A('s_lshl_b32 s24, s4, 10'); A('s_lshl_b32 s25, s6, 8'); A('s_add_u32 s24, s24, s25'); A('s_lshl_b32 s25, s5, 3'); A('s_add_u32 s24, s24, s25'); A('v_lshlrev_b32 v33, 2, v0')
    A('s_mov_b64 exec, 3'); A('buffer_store_dword v32, v33, s[8:11], s24 offen')
    A('s_or_b32 s25, s5, s6'); A('s_cmp_lg_u32 s25, 0'); A('s_cbranch_scc1 L_fe')
    A('s_mov_b64 exec, 1'); A('v_add_u32 v1, 1, v1'); A('buffer_store_dword v1, off, s[16:19], s27 sc0 sc1')
    A('L_fe:'); A('s_mov_b64 exec, -1')
    stamp(6)
    A('L_fin:')
    if stamps:
        A('s_memrealtime s[28:29]'); A('s_getreg_b32 s24, hwreg(HW_REG_XCC_ID)'); A('s_mov_b64 exec, -1'); A('s_waitcnt lgkmcnt(0)')
        A('v_mov_b32 v4, s88'); A('v_mov_b32 v5, s89'); A('v_mov_b32 v6, s28'); A('v_mov_b32 v7, s24'); A('v_mov_b32 v8, 0'); A('v_mov_b32 v9, 0')
        for k in range(1, 10): A('v_writelane_b32 v9, s%d, %d' % (90 + k, k))
        A('v_writelane_b32 v9, s28, 10')
        A('s_lshl_b32 s25, s2, 3'); A('s_add_u32 s25, s25, s3'); A('s_lshl_b32 s25, s25, 4'); A('s_lshl_b32 s24, s25, 4'); A('s_add_u32 s24, s24, 0x40000'); A('v_lshlrev_b32 v10, 2, v0')
        A('buffer_store_dword v9, v10, s[16:19], s24 offen'); A('s_mov_b64 exec, 1'); A('buffer_store_dwordx4 v[4:7], v8, s[16:19], s25 offen')
    A('L_end:')
    body = fix(L)
    H = ['; generated by work/gen.py', '; @launch grid=(256,1,1) block=(512,1,1) lds=%d' % LDSSZ,
         '.amdgcn_target "amdgcn-amd-amdhsa--gfx950"', '.text', '.globl %s_kernel' % KN, '.p2align 8', '.type %s_kernel,@function' % KN, '%s_kernel:' % KN]
    T = ['s_endpgm', '.section .rodata,"a"', '.p2align 6', '.amdhsa_kernel %s_kernel' % KN, '  .amdhsa_next_free_vgpr 256', '  .amdhsa_next_free_sgpr 102', '  .amdhsa_accum_offset 256',
         '  .amdhsa_group_segment_fixed_size 0', '  .amdhsa_kernarg_size 120', '  .amdhsa_user_sgpr_count 2', '  .amdhsa_user_sgpr_kernarg_segment_ptr 1', '  .amdhsa_system_sgpr_workgroup_id_x 1', '.end_amdhsa_kernel']
    return '\n'.join(H + [('' if l.endswith(':') else '  ') + l for l in body] + T) + '\n'
if __name__ == '__main__':
    out = sys.argv[1]; kw = {}
    for a in sys.argv[2:]:
        k, v = a.split('='); kw[k] = int(v) if v.lstrip('-').isdigit() else v
    open(out, 'w').write(gen(**kw))
```

```python
import sys
from asmlib import fix
KN = 'gated_mix__mha_block_cached__compressed_kv_cla__decode'
WSB = 0x100000
EPO = WSB; TIK = WSB + 0x1000; QAF = WSB + 0x4000; QA = WSB + 0x8000; CLF = WSB + 0x20000
PT = WSB + 0x40000; PTPH = 0x80000; YY = WSB + 0x140000; YPH = 0x40000; CLP = WSB + 0x200000
WSSZ = 0x800000
QP = 135168; QBP = QP + 2048; XB = QBP + 2048; SP = XB + 1024; CNT = SP + 2560; LDSSZ = 143360
PITCH = 1056
L2E = '0x3fb8aa3b'; SCALE = '0x3db504f3'
BOUND = 50000
def gen(NS=3, stamps=False, b2sel='j', bar0=True, G=2, dyn=0, prio=0, wf='', pf=0, gate=0, hprio=3, hrot=0, nb2=28, sprio=3, rot=1, order=1, psl=0, nob=0, dly=0, nouv=0):
    L = []; A = L.append
    cnt = [0]
    def lab(p):
        cnt[0] += 1; return 'L_%s%d' % (p, cnt[0])
    def srd(d, p, size):
        A('s_mov_b32 s%d, s%d' % (d, p)); A('s_mov_b32 s%d, s%d' % (d + 1, p + 1)); A('s_mov_b32 s%d, 0x%x' % (d + 2, size)); A('s_mov_b32 s%d, 0x20000' % (d + 3))
    def vr(a, n): return 'v[%d:%d]' % (a, a + n - 1)
    def stamp(k):
        if stamps:
            A('s_memrealtime s[28:29]'); A('s_waitcnt lgkmcnt(0)'); A('s_mov_b32 s%d, s28' % (90 + k))
    def finish():
        A('s_branch L_fin')
    def allred16(regs, op='v_add_f32'):
        for ror in (8, 4, 2, 1):
            for r in regs: A('%s_dpp v%d, v%d, v%d row_ror:%d row_mask:0xf bank_mask:0xf' % (op, r, r, r, ror))
    def allred_rows(r, t, op='v_add_f32'):
        for sw in (16, 32):
            A('v_mov_b32 v%d, v%d' % (t, r)); A('v_permlane%d_swap_b32 v%d, v%d' % (sw, r, t)); A('%s v%d, v%d, v%d' % (op, r, r, t))
    def round_scale(s0, n, t0):
        for ph in range(2):
            for i in range(0, n, 2): A('v_cvt_pk_bf16_f32 v%d, v%d, v%d' % (t0 + i // 2, s0 + i, s0 + i + 1))
            for i in range(0, n, 2):
                A('v_lshlrev_b32 v%d, 16, v%d' % (s0 + i, t0 + i // 2)); A('v_and_b32 v%d, 0xffff0000, v%d' % (s0 + i + 1, t0 + i // 2))
            if ph == 0:
                for i in range(n): A('v_mul_f32 v%d, s26, v%d' % (s0 + i, s0 + i))
    def masks(d, t):
        A('v_and_b32 v%d, 1, v4' % t); A('v_lshlrev_b32 v%d, 4, v%d' % (t, t)); A('v_mov_b32 v%d, 0xffff' % (t + 1)); A('v_lshlrev_b32 v%d, v%d, v%d' % (t, t, t + 1)); A('v_lshrrev_b32 v%d, 1, v4' % (t + 1))
        for r in range(4): A('v_cmp_eq_u32 vcc, %d, v%d' % (r, t + 1)); A('v_cndmask_b32 v%d, 0, v%d, vcc' % (d + r, t))
    def ldspoll(addr_v, target, sleep=1):
        l = lab('lp'); d = lab('lpd')
        A('s_mov_b32 s30, %d' % BOUND); A(l + ':')
        A('ds_read_b32 v28, v%d' % addr_v); A('s_waitcnt lgkmcnt(0)'); A('v_readfirstlane_b32 s31, v28')
        A('s_cmp_ge_u32 s31, %d' % target); A('s_cbranch_scc1 ' + d); A('s_sleep %d' % sleep)
        A('s_sub_u32 s30, s30, 1'); A('s_cmp_lg_u32 s30, 0'); A('s_cbranch_scc1 ' + l); A(d + ':')
    def hbar(off):
        A('v_mov_b32 v29, %d' % (CNT + off)); A('v_mov_b32 v28, 1'); A('s_waitcnt lgkmcnt(0)')
        A('s_mov_b64 exec, 1'); A('ds_add_u32 v29, v28'); A('s_mov_b64 exec, -1')
        ldspoll(29, 4)
    def gpoll(loads, check, sleep):
        l = lab('gp'); d = lab('gpd')
        A('s_mov_b32 s30, %d' % BOUND); A(l + ':')
        loads(); A('s_waitcnt vmcnt(0)'); check()
        A('s_cmp_eq_u64 vcc, -1'); A('s_cbranch_scc1 ' + d); A('s_sleep %d' % (psl if psl else sleep))
        A('s_sub_u32 s30, s30, 1'); A('s_cmp_lg_u32 s30, 0'); A('s_cbranch_scc1 ' + l); A(d + ':')
    def tagcheck(tr):
        A('v_mov_b32 v28, v%d' % tr[0]); A('v_mov_b32 v29, v%d' % tr[0]); rest = tr[1:]
        while rest:
            a = rest[0]; b = rest[1] if len(rest) > 1 else rest[0]; rest = rest[2:]
            A('v_min3_u32 v28, v28, v%d, v%d' % (a, b)); A('v_max3_u32 v29, v29, v%d, v%d' % (a, b))
        A('v_cmp_eq_u32 s[24:25], s7, v28'); A('v_cmp_eq_u32 vcc, s7, v29'); A('s_and_b64 vcc, vcc, s[24:25]')
    WB = 128; XR = 112; SEL = 8; BR = 16; DD = 24
    def wload8k(sr, NL=32, base=WB, voff=5, fl=wf):
        for t in range(NL):
            A('buffer_load_dwordx4 %s, v%d, s[%d:%d], s24 offen %s' % (vr(base + 4 * t, 4), voff, sr, sr + 3, fl))
            if t < NL - 1: A('s_add_u32 s24, s24, 8192')
    def wload8kr(sr, base=WB, voff=5, fl=wf):
        A('s_mov_b32 s25, s79')
        for t in range(32):
            A('s_add_u32 s24, s64, s25')
            A('buffer_load_dwordx4 %s, v%d, s[%d:%d], s24 offen %s' % (vr(base + 4 * t, 4), voff, sr, sr + 3, fl))
            if t < 31: A('s_add_u32 s25, s25, 8192'); A('s_and_b32 s25, s25, 0x3ffff')
    def xload(xr):
        for k in range(4):
            if rot:
                A('s_add_u32 s24, s80, %d' % (16 * k)); A('s_and_b32 s24, s24, 63'); A('s_add_u32 s24, s24, s25')
                A('buffer_load_dwordx4 %s, v28, s[20:23], s24 offen' % vr(xr + 4 * k, 4))
            else: A('buffer_load_dwordx4 %s, v28, s[20:23], s25 offen offset:%d' % (vr(xr + 4 * k, 4), 16 * k))
    def wl(sr):
        if rot: wload8kr(sr)
        else: A('s_mov_b32 s24, s64'); wload8k(sr)
    def wload1k(sr):
        for t in range(32):
            A('buffer_load_dwordx4 %s, v6, s[%d:%d], s24 offen offset:%d %s' % (vr(WB + 4 * t, 4), sr, sr + 3, (t & 3) * 1024, wf))
            if (t & 3) == 3 and t < 31: A('s_add_u32 s24, s24, 4096')
    def gemv(NL, base=WB, after=None, XR=XR):
        for t in range(NL):
            if after is not None and t % 4 == 0: A('s_waitcnt vmcnt(%d)' % min(63, after + NL - t - 4))
            b = BR + 4 * (t & 1)
            for r in range(4): A('v_perm_b32 v%d, v%d, v%d, v%d' % (b + r, XR + t // 2, XR + t // 2, SEL + 4 * (t & 1) + r))
            A('v_mfma_f32_16x16x32_bf16 %s, %s, %s, %s' % (vr(DD, 4), vr(base + 4 * t, 4), vr(b, 4), '0' if t == 0 else vr(DD, 4)))
    def d_to_x(src=DD):
        A('v_cvt_pk_bf16_f32 v28, v%d, v%d' % (src, src + 1)); A('v_cvt_pk_bf16_f32 v29, v%d, v%d' % (src + 2, src + 3))
        A('v_lshlrev_b32 v30, 6, v3'); A('v_lshl_add_u32 v31, v4, 1, v30'); A('v_add_u32 v31, v31, v7'); A('v_add_u32 v30, v30, v7')
        A('s_mov_b32 exec_lo, 0x00ff00ff'); A('s_mov_b32 exec_hi, 0x00ff00ff')
        A('ds_write_b16 v31, v28'); A('ds_write_b16_d16_hi v31, v28 offset:16'); A('ds_write_b16 v31, v29 offset:32'); A('ds_write_b16_d16_hi v31, v29 offset:48')
        A('s_mov_b64 exec, -1'); A('s_waitcnt lgkmcnt(0)')
        for k in range(4): A('ds_read_b128 %s, v30 offset:%d' % (vr(XR + 4 * k, 4), 16 * k))
        A('s_waitcnt lgkmcnt(0)')
    def d_to_lds_f32(base, wr='s63'):
        A('v_lshlrev_b32 v30, 7, v3'); A('v_lshl_add_u32 v30, v4, 2, v30'); A('s_lshl_b32 s24, %s, 9' % wr); A('s_add_u32 s24, s24, %d' % base); A('v_add_u32 v30, s24, v30')
        A('s_mov_b32 exec_lo, 0x00ff00ff'); A('s_mov_b32 exec_hi, 0x00ff00ff')
        for r in range(4): A('ds_write_b32 v30, v%d offset:%d' % (DD + r, 32 * r))
        A('s_mov_b64 exec, -1')
    def read_q(base, t0, q0):
        A('v_lshlrev_b32 v30, 5, v4'); A('v_add_u32 v30, %d, v30' % base)
        for w in range(4):
            for k in range(2): A('ds_read_b128 %s, v30 offset:%d' % (vr(t0 + 8 * w + 4 * k, 4), 512 * w + 16 * k))
        A('s_waitcnt lgkmcnt(0)')
        for i in range(8):
            A('v_add_f32 v%d, v%d, v%d' % (t0 + i, t0 + i, t0 + 8 + i)); A('v_add_f32 v%d, v%d, v%d' % (t0 + 16 + i, t0 + 16 + i, t0 + 24 + i))
        for i in range(8): A('v_add_f32 v%d, v%d, v%d' % (t0 + i, t0 + i, t0 + 16 + i))
        for i in range(4): A('v_cvt_pk_bf16_f32 v%d, v%d, v%d' % (q0 + i, t0 + 2 * i, t0 + 2 * i + 1))
    def publish_pt(d0, m, l, soff):
        A('v_mov_b32 v33, s7'); A('v_mov_b32 v35, s7'); A('v_mov_b32 v37, s7'); A('v_mov_b32 v39, s7'); A('v_mov_b32 v41, s7'); A('v_mov_b32 v43, s7')
        A('v_mov_b32 v32, v%d' % d0); A('v_mov_b32 v34, v%d' % (d0 + 1)); A('v_mov_b32 v36, v%d' % (d0 + 2)); A('v_mov_b32 v38, v%d' % (d0 + 3))
        A('v_mov_b32 v40, v%d' % m); A('v_mov_b32 v42, v%d' % l)
        A('v_lshlrev_b32 v44, 7, v3'); A('v_lshl_add_u32 v44, v4, 4, v44')
        A('s_mov_b32 exec_lo, 0x00ff00ff'); A('s_mov_b32 exec_hi, 0x00ff00ff')
        A('buffer_store_dwordx4 v[32:35], v44, s[16:19], %s offen sc1' % soff); A('buffer_store_dwordx4 v[36:39], v44, s[16:19], %s offen offset:512 sc1' % soff)
        A('s_mov_b64 exec, 1'); A('buffer_store_dwordx4 v[40:43], v44, s[16:19], %s offen offset:1024 sc1' % soff); A('s_mov_b64 exec, -1')

    A('s_cmp_ge_u32 s2, 256'); A('s_cbranch_scc1 L_end')
    A('s_load_dwordx16 s[32:47], s[0:1], 0'); A('s_load_dwordx8 s[48:55], s[0:1], 64'); A('s_load_dwordx4 s[56:59], s[0:1], 96'); A('s_load_dwordx2 s[60:61], s[0:1], 112')
    if stamps:
        A('s_memrealtime s[88:89]')
        for k in range(1, 10): A('s_mov_b32 s%d, 0' % (90 + k))
        A('v_mov_b32 v62, 0')
    A('v_lshrrev_b32 v1, 6, v0'); A('v_and_b32 v0, 63, v0'); A('v_readfirstlane_b32 s3, v1')
    A('v_lshlrev_b32 v2, 4, v0'); A('v_lshrrev_b32 v3, 4, v0'); A('v_and_b32 v4, 15, v0')
    A('s_and_b32 s24, s2, 7'); A('s_lshr_b32 s25, s2, 3')
    if G == 2:
        A('s_lshr_b32 s5, s24, 1'); A('s_lshl_b32 s5, s5, 3'); A('s_lshr_b32 s26, s25, 2'); A('s_add_u32 s26, s26, %d' % hrot); A('s_and_b32 s26, s26, 7'); A('s_add_u32 s5, s5, s26')
        A('s_bfe_u32 s4, s25, 0x10001')
        A('s_and_b32 s6, s25, 1'); A('s_lshl_b32 s6, s6, 1'); A('s_and_b32 s26, s24, 1'); A('s_add_u32 s6, s6, s26')
    elif G == 1:
        A('s_lshl_b32 s5, s24, 2'); A('s_lshr_b32 s26, s25, 3'); A('s_add_u32 s5, s5, s26'); A('s_bfe_u32 s4, s25, 0x10002'); A('s_and_b32 s6, s25, 3')
    elif G == 4:
        A('s_lshr_b32 s5, s24, 2'); A('s_lshl_b32 s5, s5, 4'); A('s_lshr_b32 s26, s25, 1'); A('s_add_u32 s5, s5, s26'); A('s_and_b32 s4, s25, 1'); A('s_and_b32 s6, s24, 3')
    A('s_lshl_b32 s62, s4, 5'); A('s_add_u32 s62, s62, s5')
    A('s_lshl_b32 s27, s4, 7'); A('s_add_u32 s27, s27, %d' % EPO)
    A('s_mov_b32 s26, %s' % SCALE)
    A('s_and_b32 s63, s3, 3')
    A('s_lshl_b32 s65, s5, 8'); A('s_lshl_b32 s64, s63, 20'); A('s_add_u32 s64, s64, s65')
    A('v_lshlrev_b32 v5, 18, v3'); A('v_lshl_add_u32 v5, v4, 4, v5'); A('v_lshlrev_b32 v28, 6, v3')
    A('s_lshl_b32 s25, s4, 10'); A('s_lshl_b32 s24, s63, 8'); A('s_add_u32 s25, s25, s24')
    A('s_bfe_u32 s80, s2, 0x20003'); A('s_lshl_b32 s79, s80, 16'); A('s_lshl_b32 s80, s80, 4')
    A('s_setprio %d' % sprio)
    A('s_cmp_ge_u32 s3, 4')
    A('s_waitcnt lgkmcnt(0)')
    A('s_load_dword s7, s[60:61], s27')
    srd(16, 60, WSSZ); srd(20, 32, 2048)
    A('s_cbranch_scc1 L_helper')

    XS = 32
    srd(8, 38, 0x400000)
    xload(XS); wl(8)
    if not order: A('s_setprio 0')
    srd(8, 34, 0x8000000); srd(12, 36, 0x8000000)
    nb1 = 64 - nb2
    A('s_lshl_b32 s24, s6, 2'); A('s_add_u32 s24, s24, s3'); A('s_mul_i32 s25, s24, %d' % nb2); A('s_mul_i32 s24, s24, %d' % nb1); A('s_sub_u32 s24, s24, %d' % (8 * (nb1 - nb2)))
    A('s_cmp_lt_u32 s6, 2'); A('s_cselect_b32 s24, s25, s24'); A('s_cselect_b32 s25, %d, %d' % (nb2, nb1)); A('s_lshl_b32 s25, s25, 12')
    A('s_lshl_b32 s24, s24, 12'); A('s_lshl_b32 s65, s62, 21'); A('s_add_u32 s65, s65, s24')
    A('s_add_u32 s66, s65, s25')
    SL = 64
    def issueK(s):
        for i in range(4): A('buffer_load_dwordx4 %s, v2, s[8:11], s%d offen offset:%d nt' % (vr(SL + 32 * s + 4 * i, 4), 68 + s, 1024 * i))
    def issueV(s):
        for i in range(4): A('buffer_load_dwordx4 %s, v2, s[12:15], s%d offen offset:%d nt' % (vr(SL + 32 * s + 16 + 4 * i, 4), 68 + s, 1024 * i))
    def nextoff(s):
        A('s_cmp_lt_u32 s65, s66'); A('s_cselect_b32 s%d, s65, 0x8000000' % (68 + s)); A('s_add_u32 s65, s65, 4096')
    N0 = min(NS, 2)
    A('s_cmp_lg_u32 s3, 0'); A('s_cbranch_scc1 L_noz')
    A('v_mov_b32 v28, %d' % CNT); A('v_lshl_add_u32 v28, v4, 2, v28'); A('v_mov_b32 v29, 0'); A('ds_write_b32 v28, v29'); A('L_noz:')
    if not order: A('s_waitcnt lgkmcnt(0)'); A('s_barrier')
    for s in range(N0):
        nextoff(s); issueK(s); issueV(s)
    if order: A('s_waitcnt lgkmcnt(0)'); A('s_barrier'); A('s_setprio 0')
    A('s_add_u32 s7, s7, 0x9e3779b1')
    def selinit():
        masks(BR, 28)
        A('v_mov_b32 v28, 0x0c0c0c0c'); A('s_mov_b32 s24, 0x01000100'); A('s_mov_b32 s25, 0x03020302')
        for r in range(4): A('v_bfi_b32 v%d, v%d, s24, v28' % (SEL + r, BR + r)); A('v_bfi_b32 v%d, v%d, s25, v28' % (SEL + 4 + r, BR + r))
    selinit()
    gemv(32, after=8 * N0, XR=XS)
    for s in range(N0, NS):
        nextoff(s); issueK(s); issueV(s)
    d_to_lds_f32(QP)
    hbar(16)
    masks(5, 17)
    A('v_mov_b32 v19, 0xf149f2ca'); A('v_mov_b32 v24, 0')
    stamp(1)
    A('v_lshlrev_b32 v21, 5, v4'); A('v_add_u32 v21, %d, v21' % QP)
    for w in range(4):
        for k in range(2): A('ds_read_b128 %s, v21 offset:%d' % (vr(32 + 8 * w + 4 * k, 4), 512 * w + 16 * k))
    for r in range(4): A('v_mov_b32 v%d, 0' % (28 + r))
    A('s_waitcnt lgkmcnt(0)')
    for i in range(8):
        A('v_add_f32 v%d, v%d, v%d' % (32 + i, 32 + i, 40 + i)); A('v_add_f32 v%d, v%d, v%d' % (48 + i, 48 + i, 56 + i))
    for i in range(8): A('v_add_f32 v%d, v%d, v%d' % (32 + i, 32 + i, 48 + i))
    for i in range(4): A('v_cvt_pk_bf16_f32 v%d, v%d, v%d' % (9 + i, 32 + 2 * i, 33 + 2 * i))
    if prio: A('s_setprio %d' % prio)
    if stamps: A('s_mov_b32 m0, 12'); A('v_mov_b32 v62, 0')
    A('L_loop:')
    for s in range(NS):
        K = SL + 32 * s; Vv = K + 16
        if stamps and s == 0: A('s_memrealtime s[28:29]')
        if stamps and s == 1: A('s_waitcnt lgkmcnt(0)'); A('v_writelane_b32 v62, s28, m0'); A('s_add_u32 m0, m0, 1')
        A('s_cmp_ge_u32 s%d, 0x8000000' % (68 + s)); A('s_cbranch_scc1 L_sdone')
        A('s_waitcnt vmcnt(%d)' % (8 * NS - 4))
        for j in range(4):
            for i in range(4): A('v_dot2_f32_bf16 v%d, v%d, v%d, %s' % (13 + i, K + 4 * i + j, 9 + j, '0' if j == 0 else 'v%d' % (13 + i)))
        nextoff(s); issueK(s)
        allred16([13, 14, 15, 16])
        round_scale(13, 4, 17)
        A('v_max3_f32 v20, v13, v14, v19'); A('v_max3_f32 v20, v15, v16, v20')
        allred_rows(20, 21, 'v_max_f32')
        A('v_sub_f32 v22, v19, v20'); A('v_mul_f32 v23, %s, v20' % L2E); A('v_mul_f32 v22, %s, v22' % L2E); A('v_mov_b32 v19, v20'); A('v_exp_f32 v22, v22')
        A('v_mov_b32 v21, %s' % L2E)
        for i in range(4): A('v_fma_f32 v%d, v%d, v21, -v23' % (13 + i, 13 + i))
        for i in range(4): A('v_exp_f32 v%d, v%d' % (13 + i, 13 + i))
        for r in range(4): A('v_mul_f32 v%d, v22, v%d' % (28 + r, 28 + r))
        for i in range(4): A('v_cvt_pk_bf16_f32 v%d, v%d, v%d' % (48 + i, 13 + i, 13 + i))
        A('v_add_f32 v17, v13, v14'); A('v_add_f32 v18, v15, v16')
        for i in range(4):
            for r in range(4): A('v_and_b32 v%d, v%d, v%d' % (32 + 4 * i + r, 48 + i, 5 + r))
        A('v_add_f32 v17, v17, v18'); A('v_fma_f32 v24, v24, v22, v17')
        A('s_waitcnt vmcnt(%d)' % (8 * NS - 4))
        for i in range(4): A('v_mfma_f32_16x16x32_bf16 v[28:31], %s, %s, v[28:31]' % (vr(Vv + 4 * i, 4), vr(32 + 4 * i, 4)))
        issueV(s)
    A('s_branch L_loop')
    A('L_sdone:')
    stamp(2)
    allred_rows(24, 21)
    A('v_lshlrev_b32 v21, 7, v3'); A('v_and_b32 v22, 7, v4'); A('v_lshl_add_u32 v21, v22, 4, v21'); A('v_add_u32 v21, %d, v21' % SP)
    A('s_mul_i32 s24, s3, 640'); A('v_add_u32 v22, s24, v21'); A('s_add_u32 s24, s24, %d' % (SP + 512)); A('v_mov_b32 v23, s24'); A('v_mov_b32 v25, v24'); A('v_mov_b32 v24, v19')
    A('s_mov_b32 exec_lo, 0x00ff00ff'); A('s_mov_b32 exec_hi, 0x00ff00ff'); A('ds_write_b128 v22, v[28:31]')
    A('s_mov_b64 exec, 1'); A('ds_write_b64 v23, v[24:25]'); A('v_mov_b32 v22, %d' % (CNT + 8)); A('v_mov_b32 v23, 1'); A('s_waitcnt lgkmcnt(0)')
    A('ds_add_rtn_u32 v23, v22, v23'); A('s_waitcnt lgkmcnt(0)'); A('s_mov_b64 exec, -1'); A('v_readfirstlane_b32 s24, v23')
    A('s_cmp_lg_u32 s24, 3'); A('s_cbranch_scc1 L_fin')
    A('v_mov_b32 v22, %d' % (SP + 512))
    for w in range(4): A('ds_read_b64 %s, v22 offset:%d' % (vr(48 + 2 * w, 2), 640 * w))
    for w in range(4): A('ds_read_b128 %s, v21 offset:%d' % (vr(32 + 4 * w, 4), 640 * w))
    A('s_waitcnt lgkmcnt(4)')
    A('v_max3_f32 v19, v48, v50, v52'); A('v_max_f32 v19, v19, v54')
    for w in range(4): A('v_sub_f32 v%d, v%d, v19' % (48 + 2 * w, 48 + 2 * w))
    for w in range(4): A('v_mul_f32 v%d, %s, v%d' % (48 + 2 * w, L2E, 48 + 2 * w))
    for w in range(4): A('v_exp_f32 v%d, v%d' % (48 + 2 * w, 48 + 2 * w))
    A('v_mul_f32 v24, v48, v49')
    for w in range(1, 4): A('v_fma_f32 v24, v%d, v%d, v24' % (48 + 2 * w, 49 + 2 * w))
    A('s_waitcnt lgkmcnt(0)')
    for r in range(4): A('v_mul_f32 v%d, v48, v%d' % (28 + r, 32 + r))
    for w in range(1, 4):
        for r in range(4): A('v_fma_f32 v%d, v%d, v%d, v%d' % (28 + r, 48 + 2 * w, 32 + 4 * w + r, 28 + r))
    A('s_lshl_b32 s24, s62, 2'); A('s_add_u32 s24, s24, s6'); A('s_lshl_b32 s24, s24, 11'); A('s_add_u32 s24, s24, %d' % (PT + PTPH))
    publish_pt(28, 19, 24, 's24')
    finish()

    A('L_helper:')
    A('s_setprio %d' % hprio)
    srd(12, 46, 0x400000)
    if order: A('s_waitcnt lgkmcnt(0)'); A('s_barrier')
    if nob == 1: A('s_branch L_fin')
    xload(XR); wl(12)
    srd(8, 48, 0x400000)
    A('v_lshlrev_b32 v31, 16, v3'); A('v_lshl_add_u32 v31, v4, 4, v31')
    A('s_lshl_b32 s24, s6, 2'); A('s_add_u32 s24, s24, s63'); A('s_lshl_b32 s66, s24, 6'); A('s_lshl_b32 s24, s24, 18'); A('s_add_u32 s24, s24, s65')
    wload8k(8, NL=8, base=48, voff=31)
    if not order: A('s_waitcnt lgkmcnt(0)'); A('s_barrier')
    A('s_and_b32 s67, s6, 1'); A('s_lshl_b32 s24, s5, 1'); A('s_add_u32 s67, s67, s24')
    def dma():
        srd(8, 44, 0x1000000)
        A('s_lshl_b32 s24, s4, 23'); A('s_lshl_b32 s25, s67, 17'); A('s_add_u32 s24, s24, s25'); A('s_lshl_b32 s25, s63, 15'); A('s_add_u32 s24, s24, s25')
        A('s_mul_i32 s25, s63, %d' % (32 * PITCH)); A('s_mov_b32 m0, s25')
        for r in range(32):
            A('buffer_load_dwordx4 v2, s[8:11], s24 offen offset:%d nt lds' % ((r & 3) * 1024))
            if r < 31:
                A('s_add_u32 m0, m0, %d' % (PITCH - 1024 if (r & 3) != 3 else PITCH + 3072))
                if (r & 3) == 3: A('s_add_u32 s24, s24, 4096')
    if not order:
        A('s_cmp_ge_u32 s6, 2'); A('s_cbranch_scc1 L_nodma'); dma()
    def qbphase(extra):
        selinit()
        gemv(32, after=8 + extra)
        stamp(7)
        d_to_lds_f32(QBP)
        hbar(0)
        stamp(8)
        read_q(QBP, 80, 44)
        A('s_waitcnt vmcnt(%d)' % extra)
    if not order:
        qbphase(32)
        A('s_branch L_dmaj')
        A('L_nodma:')
    qbphase(0)
    A('L_dmaj:')
    A('s_add_u32 s7, s7, 0x9e3779b1')
    A('v_lshlrev_b32 v6, 15, v3'); A('v_lshl_add_u32 v6, v4, 4, v6')
    A('s_lshl_b32 s24, s63, 8'); A('s_add_u32 s24, s24, %d' % XB); A('v_mov_b32 v7, s24')
    stamp(9)
    for j in range(4):
        for t in range(8): A('v_dot2_f32_bf16 v%d, v%d, v%d, %s' % (32 + t, 48 + 4 * t + j, 44 + j, '0' if j == 0 else 'v%d' % (32 + t)))
    allred16(list(range(32, 40)))
    for i in range(4): A('v_cvt_pk_bf16_f32 v%d, v%d, v%d' % (40 + i, 32 + 2 * i, 33 + 2 * i))
    A('s_lshl_b32 s24, s62, 10'); A('s_add_u32 s24, s24, s66'); A('s_add_u32 s24, s24, %d' % QA); A('v_lshlrev_b32 v28, 4, v3')
    A('s_mov_b32 exec_lo, 0x00010001'); A('s_mov_b32 exec_hi, 0x00010001')
    A('buffer_store_dwordx4 v[40:43], v28, s[16:19], s24 offen sc1')
    A('s_lshl_b32 s24, s62, 6'); A('s_lshr_b32 s25, s66, 4'); A('s_add_u32 s24, s24, s25'); A('s_add_u32 s24, s24, %d' % QAF)
    A('v_mov_b32 v28, s7'); A('s_mov_b64 exec, 1'); A('s_waitcnt vmcnt(0)')
    A('buffer_store_dword v28, off, s[16:19], s24 sc1'); A('s_mov_b64 exec, -1')
    stamp(2)
    if nob == 2: A('s_branch L_fin')
    A('s_cmp_ge_u32 s6, 2'); A('s_cbranch_scc1 L_roles')
    if order: dma()
    A('s_and_b32 s68, s63, 1'); A('s_lshr_b32 s69, s63, 1')
    A('s_lshl_b32 s70, s68, 4'); A('s_lshl_b32 s24, s4, 5'); A('s_add_u32 s70, s70, s24')
    A('s_lshl_b32 s71, s70, 6'); A('s_add_u32 s71, s71, %d' % QAF)
    gpoll(lambda: A('buffer_load_dwordx4 v[32:35], v2, s[16:19], s71 offen sc1'), lambda: tagcheck([32, 33, 34, 35]), 8)
    A('v_lshlrev_b32 v30, 10, v4'); A('v_lshl_add_u32 v30, v3, 4, v30'); A('s_lshl_b32 s24, s70, 10'); A('s_add_u32 s24, s24, %d' % QA)
    for ks in range(16): A('buffer_load_dwordx4 %s, v30, s[16:19], s24 offen offset:%d sc1' % (vr(128 + 4 * ks, 4), 64 * ks))
    hbar(4)
    stamp(3)
    A('v_mul_u32_u24 v32, %d, v4' % PITCH); A('v_lshl_add_u32 v32, v3, 4, v32'); A('v_add_u32 v33, %d, v32' % (64 * PITCH))
    A('s_waitcnt vmcnt(0)')
    groups = [(T, kq) for T in range(8) for kq in range(4)]
    def rdS(gi):
        T, kq = groups[gi]
        for i in range(4): A('ds_read_b128 %s, v%d offset:%d' % (vr(192 + 16 * (gi % 3) + 4 * i, 4), 32 + (T >> 2), (T & 3) * 16 * PITCH + 64 * (4 * kq + i)))
    rdS(0); rdS(1)
    for gi, (T, kq) in enumerate(groups):
        if gi + 2 < len(groups): rdS(gi + 2)
        A('s_waitcnt lgkmcnt(%d)' % (4 * min(2, len(groups) - 1 - gi)))
        for i in range(4):
            ks = 4 * kq + i
            A('v_mfma_f32_16x16x32_bf16 %s, %s, %s, %s' % (vr(48 + 4 * T, 4), vr(192 + 16 * (gi % 3) + 4 * i, 4), vr(128 + 4 * ks, 4), '0' if ks == 0 else vr(48 + 4 * T, 4)))
    round_scale(48, 32, 80)
    A('v_max3_f32 v34, v48, v49, v50')
    for i in range(51, 79, 2): A('v_max3_f32 v34, v34, v%d, v%d' % (i, i + 1))
    A('v_max_f32 v34, v34, v79')
    allred_rows(34, 35, 'v_max_f32')
    A('v_mul_f32 v35, %s, v34' % L2E); A('v_mov_b32 v36, %s' % L2E)
    for i in range(32): A('v_fma_f32 v%d, v%d, v36, -v35' % (48 + i, 48 + i))
    for i in range(32): A('v_exp_f32 v%d, v%d' % (48 + i, 48 + i))
    for i in range(16): A('v_cvt_pk_bf16_f32 v%d, v%d, v%d' % (80 + i, 48 + 2 * i, 49 + 2 * i))
    for n in (16, 8, 4, 2, 1):
        for i in range(n): A('v_add_f32 v%d, v%d, v%d' % (48 + i, 48 + i, 48 + n + i))
    allred_rows(48, 35)
    A('v_lshrrev_b32 v32, 2, v4'); A('v_lshl_add_u32 v32, v3, 2, v32'); A('v_mul_u32_u24 v32, %d, v32' % PITCH); A('v_and_b32 v33, 3, v4'); A('v_lshl_add_u32 v32, v33, 4, v32')
    A('s_lshl_b32 s24, s69, 9'); A('v_add_u32 v32, s24, v32'); A('v_add_u32 v33, %d, v32' % (64 * PITCH))
    A('v_lshlrev_b32 v36, 16, v4'); A('v_lshl_add_u32 v36, v3, 4, v36')
    A('s_lshl_b32 s72, s70, 16'); A('s_lshl_b32 s24, s69, 15'); A('s_add_u32 s72, s72, s24'); A('s_lshl_b32 s24, s67, 8'); A('s_add_u32 s72, s72, s24'); A('s_add_u32 s72, s72, %d' % CLP); A('s_add_u32 s73, s72, 16384')
    g2 = [(P, up, uh) for P in range(8) for up in range(2) for uh in range(2)]
    def rdP(gi):
        P, up, uh = g2[gi]
        for i in range(4):
            A('ds_read_b64_tr_b16 %s, v%d offset:%d' % (vr(192 + 8 * (gi % 3) + 2 * i, 2), 32 + uh, i * 16 * PITCH + 64 * P + 8 * up))
    rdP(0); rdP(1)
    for gi, (P, up, uh) in enumerate(g2):
        if gi + 2 < len(g2): rdP(gi + 2)
        A('s_waitcnt lgkmcnt(%d)' % (4 * min(2, len(g2) - 1 - gi)))
        acc = 96 + 8 * (P & 1) + 4 * up
        for i in range(2):
            u = 2 * uh + i
            A('v_mfma_f32_16x16x32_bf16 %s, %s, %s, %s' % (vr(acc, 4), vr(192 + 8 * (gi % 3) + 4 * i, 4), vr(80 + 4 * u, 4), '0' if u == 0 else vr(acc, 4)))
        def flush(Pp):
            a = 96 + 8 * (Pp & 1); o = 64 + 4 * (Pp & 1)
            for i in range(4): A('v_cvt_pk_bf16_f32 v%d, v%d, v%d' % (o + i, a + 2 * i, a + 2 * i + 1))
            A('buffer_store_dwordx4 %s, v36, s[16:19], s%d offen offset:%d sc1' % (vr(o, 4), 72 + (Pp >> 2), 64 * (Pp & 3)))
        if up == 0 and uh == 1 and P > 0: flush(P - 1)
    flush(7)
    A('v_mov_b32 v40, v34'); A('v_mov_b32 v41, s7'); A('v_mov_b32 v42, v48'); A('v_mov_b32 v43, s7'); A('v_lshlrev_b32 v36, 11, v4')
    A('s_lshl_b32 s24, s70, 11'); A('s_lshl_b32 s25, s69, 10'); A('s_add_u32 s24, s24, s25'); A('s_lshl_b32 s25, s67, 4'); A('s_add_u32 s24, s24, s25'); A('s_add_u32 s24, s24, %d' % CLF)
    A('s_mov_b64 exec, 0xffff'); A('s_waitcnt vmcnt(0)')
    A('buffer_store_dwordx4 v[40:43], v36, s[16:19], s24 offen sc1'); A('s_mov_b64 exec, -1')
    stamp(4)
    A('L_roles:')
    if nob == 3: A('s_branch L_fin')
    if nob == 4: A('s_cmp_lg_u32 s63, 1'); A('s_cbranch_scc1 L_fin')
    if nob == 5: A('s_cmp_eq_u32 s63, 0'); A('s_cbranch_scc1 L_fin')
    A('s_cmp_eq_u32 s63, 0'); A('s_cbranch_scc1 L_final'); A('s_cmp_eq_u32 s63, 2'); A('s_cbranch_scc1 L_tail'); A('s_cmp_eq_u32 s63, 3'); A('s_cbranch_scc1 L_fin')
    srd(8, 50, 0x400000)
    A('s_lshl_b32 s24, s6, 20'); A('s_add_u32 s24, s24, s65')
    if not nouv: wload8k(8)
    if dly:
        A('L_dly:'); A('s_sleep 8'); A('s_memrealtime s[28:29]'); A('s_waitcnt lgkmcnt(0)'); A('s_sub_u32 s28, s28, s88'); A('s_cmp_lt_u32 s28, %d' % (dly * 100)); A('s_cbranch_scc1 L_dly')
    stamp(7)
    A('s_lshl_b32 s71, s62, 11'); A('s_lshr_b32 s24, s6, 1'); A('s_lshl_b32 s24, s24, 10'); A('s_add_u32 s71, s71, s24'); A('s_add_u32 s71, s71, %d' % CLF)
    gpoll(lambda: A('buffer_load_dwordx4 v[32:35], v2, s[16:19], s71 offen sc1'), lambda: tagcheck([33, 35]), 16)
    stamp(5)
    if stamps: A('s_sub_u32 s24, %d, s30' % BOUND); A('s_mul_i32 s24, s24, 100'); A('s_add_u32 s98, s88, s24')
    A('v_lshlrev_b32 v30, 12, v3'); A('v_lshl_add_u32 v30, v4, 4, v30')
    A('s_lshl_b32 s24, s62, 2'); A('s_add_u32 s74, s24, s6'); A('s_lshl_b32 s24, s74, 14'); A('s_add_u32 s24, s24, %d' % CLP)
    for t in range(16): A('buffer_load_dwordx4 %s, v30, s[16:19], s24 offen offset:%d sc1' % (vr(48 + 4 * t, 4), 256 * t))
    A('v_mov_b32 v36, v32'); allred16([36], 'v_max_f32'); allred_rows(36, 37, 'v_max_f32')
    A('v_sub_f32 v32, v32, v36'); A('v_mul_f32 v32, %s, v32' % L2E); A('v_exp_f32 v32, v32'); A('v_mul_f32 v36, v32, v34')
    allred16([36]); allred_rows(36, 37)
    A('v_rcp_f32 v36, v36'); A('v_mul_f32 v32, v32, v36'); A('v_cvt_pk_bf16_f32 v32, v32, v32')
    A('v_lshl_add_u32 v30, v0, 1, v7'); A('ds_write_b16 v30, v32'); A('v_lshl_add_u32 v30, v3, 5, v7'); A('s_waitcnt lgkmcnt(0)')
    for k in range(2): A('ds_read_b128 %s, v30 offset:%d' % (vr(XR + 4 * k, 4), 16 * k))
    A('s_waitcnt lgkmcnt(0)')
    gemv(16, base=48, after=0)
    d_to_x()
    gemv(32)
    A('v_mov_b32 v45, 0'); A('v_mov_b32 v46, 0x3e800000'); A('s_lshl_b32 s24, s74, 11'); A('s_add_u32 s24, s24, %d' % PT)
    publish_pt(DD, 45, 46, 's24')
    A('v_mov_b32 v29, %d' % (CNT + 12)); A('v_mov_b32 v28, 4'); A('s_mov_b64 exec, 1'); A('ds_add_u32 v29, v28'); A('s_mov_b64 exec, -1')
    stamp(6)
    finish()
    A('L_tail:')
    srd(8, 52, 0x400000)
    A('s_mov_b32 s75, 0'); A('s_lshl_b32 s76, s62, 13'); A('s_add_u32 s76, s76, %d' % PT)
    A('s_lshl_b32 s77, s4, 2'); A('s_add_u32 s77, s77, s6'); A('s_lshl_b32 s77, s77, 5'); A('s_add_u32 s77, s77, s5'); A('s_lshl_b32 s77, s77, 10'); A('s_add_u32 s77, s77, %d' % YY)
    A('v_lshlrev_b32 v47, 7, v3'); A('v_and_b32 v28, 7, v4'); A('v_lshl_add_u32 v47, v28, 4, v47'); A('v_mov_b32 v46, 0'); A('s_add_u32 s78, s76, 4096')
    A('v_lshlrev_b32 v45, 8, v3'); A('v_lshl_add_u32 v45, v4, 3, v45'); A('v_mov_b32 v44, %d' % (CNT + 12))
    A('L_tph:')
    A('s_lshl_b32 s24, s5, 17'); A('s_lshl_b32 s25, s6, 8'); A('s_add_u32 s24, s24, s25'); wload1k(8)
    ldspoll(44, 4, 4)
    def gl():
        for m in range(4):
            so = 76 if m < 2 else 78; o = 2048 * (m & 1)
            A('buffer_load_dwordx4 %s, v47, s[16:19], s%d offen offset:%d sc1' % (vr(48 + 12 * m, 4), so, o))
            A('buffer_load_dwordx4 %s, v47, s[16:19], s%d offen offset:%d sc1' % (vr(52 + 12 * m, 4), so, o + 512))
            A('buffer_load_dwordx4 %s, v46, s[16:19], s%d offen offset:%d sc1' % (vr(56 + 12 * m, 4), so, o + 1024))
    gpoll(gl, lambda: tagcheck(list(range(49, 96, 2))), 4)
    A('v_max3_f32 v32, v56, v68, v80'); A('v_max_f32 v32, v32, v92')
    for m in range(4): A('v_sub_f32 v%d, v%d, v32' % (56 + 12 * m, 56 + 12 * m))
    for m in range(4): A('v_mul_f32 v%d, %s, v%d' % (56 + 12 * m, L2E, 56 + 12 * m))
    for m in range(4): A('v_exp_f32 v%d, v%d' % (56 + 12 * m, 56 + 12 * m))
    A('v_mul_f32 v32, v56, v58')
    for m in range(1, 4): A('v_fma_f32 v32, v%d, v%d, v32' % (56 + 12 * m, 58 + 12 * m))
    A('v_rcp_f32 v32, v32')
    for r in range(4): A('v_mul_f32 v%d, v56, v%d' % (36 + r, 48 + 2 * r))
    for m in range(1, 4):
        for r in range(4): A('v_fma_f32 v%d, v%d, v%d, v%d' % (36 + r, 56 + 12 * m, 48 + 12 * m + 2 * r, 36 + r))
    for r in range(4): A('v_mul_f32 v%d, v32, v%d' % (36 + r, 36 + r))
    d_to_x(36)
    gemv(32)
    for r in range(4): A('v_mov_b32 v%d, s7' % (33 + 2 * r))
    for r in range(4): A('v_mov_b32 v%d, v%d' % (32 + 2 * r, DD + r))
    A('s_mov_b32 exec_lo, 0x00ff00ff'); A('s_mov_b32 exec_hi, 0x00ff00ff')
    for r in range(4): A('buffer_store_dwordx2 %s, v45, s[16:19], s77 offen offset:%d sc1' % (vr(32 + 2 * r, 2), 64 * r))
    A('s_mov_b64 exec, -1')
    A('s_cmp_lg_u32 s75, 0'); A('s_cbranch_scc1 L_tailend')
    stamp(5)
    A('v_mov_b32 v44, %d' % (CNT + 8)); A('s_mov_b32 s75, 1'); A('s_mov_b32 s8, s40'); A('s_mov_b32 s9, s41'); A('s_add_u32 s76, s76, %d' % PTPH); A('s_add_u32 s78, s78, %d' % PTPH); A('s_add_u32 s77, s77, %d' % YPH)
    A('s_branch L_tph')
    A('L_tailend:')
    stamp(6)
    finish()
    A('L_final:')
    srd(8, 54, 1024); A('s_lshl_b32 s25, s4, 10')
    A('buffer_load_dwordx4 v[32:35], v2, s[20:23], s25 offen'); A('buffer_load_dwordx4 v[36:39], v2, s[8:11], 0 offen')
    A('s_lshl_b32 s77, s4, 2'); A('s_add_u32 s77, s77, s6'); A('s_lshl_b32 s77, s77, 15'); A('s_lshl_b32 s24, s5, 5'); A('s_add_u32 s77, s77, s24'); A('s_add_u32 s77, s77, %d' % YY)
    A('v_lshrrev_b32 v47, 1, v0'); A('v_lshlrev_b32 v47, 10, v47'); A('v_and_b32 v28, 1, v0'); A('v_lshl_add_u32 v47, v28, 4, v47'); A('v_mov_b32 v44, %d' % (CNT + 12)); A('s_mov_b32 s75, 0')
    A('s_waitcnt vmcnt(0)')
    for i in range(4):
        A('v_lshlrev_b32 v%d, 16, v%d' % (48 + 2 * i, 32 + i)); A('v_and_b32 v%d, 0xffff0000, v%d' % (49 + 2 * i, 32 + i))
        A('v_lshlrev_b32 v%d, 16, v%d' % (56 + 2 * i, 36 + i)); A('v_and_b32 v%d, 0xffff0000, v%d' % (57 + 2 * i, 36 + i))
    for i in range(8): A('v_mul_f32 v%d, v%d, v%d' % (48 + i, 48 + i, 56 + i))
    for i in range(4): A('v_cvt_pk_bf16_f32 v%d, v%d, v%d' % (56 + i, 48 + 2 * i, 49 + 2 * i))
    for i in range(4): A('v_lshlrev_b32 v%d, 16, v%d' % (48 + 2 * i, 56 + i)); A('v_and_b32 v%d, 0xffff0000, v%d' % (49 + 2 * i, 56 + i))
    for n in (4, 2, 1):
        for i in range(n): A('v_add_f32 v%d, v%d, v%d' % (48 + i, 48 + i, 48 + n + i))
    allred16([48]); allred_rows(48, 49)
    A('v_cvt_pk_bf16_f32 v48, v48, v48'); A('v_lshlrev_b32 v48, 16, v48'); A('v_mul_f32 v48, 0xbfb8aa3b, v48'); A('v_exp_f32 v48, v48'); A('v_add_f32 v48, 1.0, v48'); A('v_rcp_f32 v48, v48')
    A('v_cvt_pk_bf16_f32 v48, v48, v48'); A('v_lshlrev_b32 v40, 16, v48'); A('v_sub_f32 v41, 1.0, v40'); A('v_cvt_pk_bf16_f32 v41, v41, v41'); A('v_lshlrev_b32 v41, 16, v41')
    A('L_fph:')
    ldspoll(44, 4, 4)
    gpoll(lambda: A('buffer_load_dwordx4 v[32:35], v47, s[16:19], s77 offen sc1'), lambda: tagcheck([33, 35]), 4)
    for ror in (8, 4, 2):
        for r in (32, 34): A('v_add_f32_dpp v%d, v%d, v%d row_ror:%d row_mask:0xf bank_mask:0xf' % (r, r, r, ror))
    allred_rows(32, 36); allred_rows(34, 36)
    A('v_cvt_pk_bf16_f32 v32, v32, v34'); A('v_and_b32 v33, 0xffff0000, v32'); A('v_lshlrev_b32 v32, 16, v32')
    A('v_mul_f32 v32, v41, v32'); A('v_mul_f32 v33, v41, v33'); A('v_cvt_pk_bf16_f32 v32, v32, v33'); A('v_and_b32 v33, 0xffff0000, v32'); A('v_lshlrev_b32 v32, 16, v32')
    A('s_cmp_lg_u32 s75, 0'); A('s_cbranch_scc1 L_fout')
    stamp(5)
    A('v_mov_b32 v42, v32'); A('v_mov_b32 v43, v33'); A('v_mov_b32 v41, v40'); A('v_mov_b32 v44, %d' % (CNT + 8)); A('s_mov_b32 s75, 1'); A('s_add_u32 s77, s77, %d' % YPH); A('s_branch L_fph')
    A('L_fout:')
    A('v_add_f32 v32, v32, v42'); A('v_add_f32 v33, v33, v43'); A('v_cvt_pk_bf16_f32 v32, v32, v33')
    srd(8, 56, 2048)
    A('s_lshl_b32 s24, s4, 10'); A('s_lshl_b32 s25, s6, 8'); A('s_add_u32 s24, s24, s25'); A('s_lshl_b32 s25, s5, 3'); A('s_add_u32 s24, s24, s25'); A('v_lshlrev_b32 v33, 2, v0')
    A('s_mov_b64 exec, 3'); A('buffer_store_dword v32, v33, s[8:11], s24 offen')
    A('s_or_b32 s25, s5, s6'); A('s_cmp_lg_u32 s25, 0'); A('s_cbranch_scc1 L_fe')
    A('s_mov_b64 exec, 1'); A('s_sub_u32 s24, s7, 0x9e3779b0'); A('v_mov_b32 v1, s24'); A('buffer_store_dword v1, off, s[16:19], s27 sc0 sc1')
    A('L_fe:'); A('s_mov_b64 exec, -1')
    stamp(6)
    A('L_fin:')
    if stamps:
        A('s_memrealtime s[28:29]'); A('s_getreg_b32 s24, hwreg(HW_REG_XCC_ID)'); A('s_mov_b64 exec, -1'); A('s_waitcnt lgkmcnt(0)')
        A('v_mov_b32 v4, s88'); A('v_mov_b32 v5, s89'); A('v_mov_b32 v6, s28'); A('v_mov_b32 v7, s24'); A('v_mov_b32 v8, 0'); A('v_mov_b32 v9, v62')
        for k in range(1, 10): A('v_writelane_b32 v9, s%d, %d' % (90 + k, k))
        A('v_writelane_b32 v9, s28, 10')
        A('s_lshl_b32 s25, s2, 3'); A('s_add_u32 s25, s25, s3'); A('s_lshl_b32 s25, s25, 4'); A('s_lshl_b32 s24, s25, 4'); A('s_add_u32 s24, s24, 0x40000'); A('v_lshlrev_b32 v10, 2, v0')
        A('buffer_store_dword v9, v10, s[16:19], s24 offen'); A('s_mov_b64 exec, 1'); A('buffer_store_dwordx4 v[4:7], v8, s[16:19], s25 offen')
    A('L_end:')
    body = fix(L)
    H = ['; generated by work/gen.py', '; @launch grid=(256,1,1) block=(512,1,1) lds=%d' % LDSSZ,
         '.amdgcn_target "amdgcn-amd-amdhsa--gfx950"', '.text', '.globl %s_kernel' % KN, '.p2align 8', '.type %s_kernel,@function' % KN, '%s_kernel:' % KN]
    T = ['s_endpgm', '.section .rodata,"a"', '.p2align 6', '.amdhsa_kernel %s_kernel' % KN, '  .amdhsa_next_free_vgpr 256', '  .amdhsa_next_free_sgpr 102', '  .amdhsa_accum_offset 256',
         '  .amdhsa_group_segment_fixed_size 0', '  .amdhsa_kernarg_size 120', '  .amdhsa_user_sgpr_count 2', '  .amdhsa_user_sgpr_kernarg_segment_ptr 1', '  .amdhsa_system_sgpr_workgroup_id_x 1', '.end_amdhsa_kernel']
    return '\n'.join(H + [('' if l.endswith(':') else '  ') + l for l in body] + T) + '\n'
if __name__ == '__main__':
    out = sys.argv[1]; kw = {}
    for a in sys.argv[2:]:
        k, v = a.split('='); kw[k] = int(v) if v.lstrip('-').isdigit() else v
    open(out, 'w').write(gen(**kw))
```

```python
import sys
from asmlib import fix
KN = 'gated_mix__mha_block_cached__compressed_kv_cla__decode'
WSB = 0x100000
EPO = WSB; QX = WSB + 0x1000; QAF = WSB + 0xA000; TIK = WSB + 0xB000; QA = WSB + 0x10000; CLF = WSB + 0x20000
PT = WSB + 0x40000; YY = WSB + 0xC0000; YPH = 0x40000; CLP = WSB + 0x200000
WSSZ = 0x800000
PITCH = 1056; CBUF = 64 * PITCH
QP = 135168; CTXP = QP + 4096; XB = QP + 8192; XA = XB + 4096; SP = XA + 512; CNT = SP + 5120; LDSSZ = CNT + 256
L2E = '0x3fb8aa3b'; SCALE = '0x3db504f3'
BOUND = 50000
def gen(NS=4, stamps=False, wf='nt', rot=1, c0=39, c1=39, c2=38, uvsl=127, nob=0, qsl=4, ptsl=6, sprio=0, SW=4, wqa=1, cprio=3, bprio=3):
    L = []; A = L.append
    cnt = [0]
    def lab(p):
        cnt[0] += 1; return 'L_%s%d' % (p, cnt[0])
    def srd(d, p, size):
        A('s_mov_b32 s%d, s%d' % (d, p)); A('s_mov_b32 s%d, s%d' % (d + 1, p + 1)); A('s_mov_b32 s%d, 0x%x' % (d + 2, size)); A('s_mov_b32 s%d, 0x20000' % (d + 3))
    def vr(a, n): return 'v[%d:%d]' % (a, a + n - 1)
    def stamp(k):
        if stamps:
            A('s_memrealtime s[28:29]'); A('s_waitcnt lgkmcnt(0)'); A('s_mov_b32 s%d, s28' % (90 + k))
    def allred16(regs, op='v_add_f32'):
        for ror in (8, 4, 2, 1):
            for r in regs: A('%s_dpp v%d, v%d, v%d row_ror:%d row_mask:0xf bank_mask:0xf' % (op, r, r, r, ror))
    def allred_rows(r, t, op='v_add_f32', sws=(16, 32)):
        for sw in sws:
            A('v_mov_b32 v%d, v%d' % (t, r)); A('v_permlane%d_swap_b32 v%d, v%d' % (sw, r, t)); A('%s v%d, v%d, v%d' % (op, r, r, t))
    def round_scale(s0, n, t0):
        for ph in range(2):
            for i in range(0, n, 2): A('v_cvt_pk_bf16_f32 v%d, v%d, v%d' % (t0 + i // 2, s0 + i, s0 + i + 1))
            for i in range(0, n, 2):
                A('v_lshlrev_b32 v%d, 16, v%d' % (s0 + i, t0 + i // 2)); A('v_and_b32 v%d, 0xffff0000, v%d' % (s0 + i + 1, t0 + i // 2))
            if ph == 0:
                for i in range(n): A('v_mul_f32 v%d, s26, v%d' % (s0 + i, s0 + i))
    def masks(d, t, n=4):
        A('v_and_b32 v%d, 1, v%d' % (t, n)); A('v_lshlrev_b32 v%d, 4, v%d' % (t, t)); A('v_mov_b32 v%d, 0xffff' % (t + 1)); A('v_lshlrev_b32 v%d, v%d, v%d' % (t, t, t + 1)); A('v_lshrrev_b32 v%d, 1, v%d' % (t + 1, n))
        for r in range(4): A('v_cmp_eq_u32 vcc, %d, v%d' % (r, t + 1)); A('v_cndmask_b32 v%d, 0, v%d, vcc' % (d + r, t))
    def ldspoll(addr_v, target, sleep=1):
        l = lab('lp'); d = lab('lpd')
        A('s_mov_b32 s30, %d' % BOUND); A(l + ':')
        A('ds_read_b32 v28, v%d' % addr_v); A('s_waitcnt lgkmcnt(0)'); A('v_readfirstlane_b32 s31, v28')
        A('s_cmp_ge_u32 s31, %s' % target); A('s_cbranch_scc1 ' + d); A('s_sleep %d' % sleep)
        A('s_sub_u32 s30, s30, 1'); A('s_cmp_lg_u32 s30, 0'); A('s_cbranch_scc1 ' + l); A(d + ':')
    def ldsinc(addr):
        A('v_mov_b32 v29, %s' % addr); A('v_mov_b32 v28, 1'); A('s_waitcnt lgkmcnt(0)')
        A('s_mov_b64 exec, 1'); A('ds_add_u32 v29, v28'); A('s_mov_b64 exec, -1')
    def hbar(addr, target):
        ldsinc(addr); ldspoll(29, target)
    def gpoll(loads, check, sleep, body=None):
        l = lab('gp'); d = lab('gpd')
        A('s_mov_b32 s30, %d' % BOUND); A(l + ':')
        loads(); A('s_waitcnt vmcnt(0)'); check()
        if body:
            A('s_mov_b64 s[82:83], vcc'); body(); A('s_cmp_eq_u64 s[82:83], -1')
        else: A('s_cmp_eq_u64 vcc, -1')
        A('s_cbranch_scc1 ' + d); A('s_sleep %d' % sleep)
        A('s_sub_u32 s30, s30, 1'); A('s_cmp_lg_u32 s30, 0'); A('s_cbranch_scc1 ' + l); A(d + ':')
    def tagcheck(tr):
        A('v_mov_b32 v28, v%d' % tr[0]); A('v_mov_b32 v29, v%d' % tr[0]); rest = tr[1:]
        while rest:
            a = rest[0]; b = rest[1] if len(rest) > 1 else rest[0]; rest = rest[2:]
            A('v_min3_u32 v28, v28, v%d, v%d' % (a, b)); A('v_max3_u32 v29, v29, v%d, v%d' % (a, b))
        A('v_cmp_eq_u32 s[24:25], s7, v28'); A('v_cmp_eq_u32 vcc, s7, v29'); A('s_and_b64 vcc, vcc, s[24:25]')
    WB = 128; XR = 112; SEL = 8; BR = 16; DD = 24
    def wl(sr, NL=32, voff=5, r=True):
        A('s_mov_b32 s25, %s' % ('s79' if (rot and r) else '0'))
        for t in range(NL):
            A('s_add_u32 s24, s64, s25')
            A('buffer_load_dwordx4 %s, v%d, s[%d:%d], s24 offen %s' % (vr(WB + 4 * t, 4), voff, sr, sr + 3, wf))
            if t < NL - 1: A('s_add_u32 s25, s25, 8192'); A('s_and_b32 s25, s25, 0x%x' % (NL * 8192 - 1))
    def xload(NL=32):
        for k in range(NL // 8):
            A('s_add_u32 s24, %s, %d' % ('s80' if rot else '0', 16 * k)); A('s_and_b32 s24, s24, %d' % (2 * NL - 1)); A('s_add_u32 s24, s24, s27')
            A('buffer_load_dwordx4 %s, v28, s[20:23], s24 offen' % vr(XR + 4 * k, 4))
    def wload1k(sr):
        for t in range(32):
            A('buffer_load_dwordx4 %s, v6, s[%d:%d], s24 offen offset:%d %s' % (vr(WB + 4 * t, 4), sr, sr + 3, (t & 3) * 1024, wf))
            if (t & 3) == 3 and t < 31: A('s_add_u32 s24, s24, 4096')
    def gemv(NL, base=WB, after=None):
        for t in range(NL):
            if after is not None and t % 4 == 0: A('s_waitcnt vmcnt(%d)' % min(63, after + NL - t - 4))
            b = BR + 4 * (t & 1)
            for r in range(4): A('v_perm_b32 v%d, v%d, v%d, v%d' % (b + r, XR + t // 2, XR + t // 2, SEL + 4 * (t & 1) + r))
            A('v_mfma_f32_16x16x32_bf16 %s, %s, %s, %s' % (vr(DD, 4), vr(base + 4 * t, 4), vr(b, 4), '0' if t == 0 else vr(DD, 4)))
    def selinit():
        masks(BR, 28, n=1)
        A('v_mov_b32 v28, 0x0c0c0c0c'); A('s_mov_b32 s24, 0x01000100'); A('s_mov_b32 s25, 0x03020302')
        for r in range(4): A('v_bfi_b32 v%d, v%d, s24, v28' % (SEL + r, BR + r)); A('v_bfi_b32 v%d, v%d, s25, v28' % (SEL + 4 + r, BR + r))
    def d_to_lds_f32(base, wr):
        A('v_lshlrev_b32 v30, 1, v7'); A('v_lshl_add_u32 v30, v1, 2, v30'); A('s_lshl_b32 s24, %s, 10' % wr); A('s_add_u32 s24, s24, %d' % base); A('v_add_u32 v30, s24, v30')
        for r in range(4): A('ds_write_b32 v30, v%d offset:%d' % (DD + r, 32 * r))
    def zero_cnt(l):
        A('s_cmp_lg_u32 s3, 0'); A('s_cbranch_scc1 ' + l)
        A('v_mov_b32 v28, %d' % CNT); A('v_lshl_add_u32 v28, v4, 2, v28'); A('v_mov_b32 v29, 0'); A('ds_write_b32 v28, v29'); A(l + ':')
    TAGADD = 's_add_u32 s7, s7, 0x9e3779b1'

    A('s_cmp_ge_u32 s2, 256'); A('s_cbranch_scc1 L_end')
    A('s_load_dwordx16 s[32:47], s[0:1], 0'); A('s_load_dwordx8 s[48:55], s[0:1], 64'); A('s_load_dwordx4 s[56:59], s[0:1], 96'); A('s_load_dwordx2 s[60:61], s[0:1], 112')
    if stamps:
        A('s_memrealtime s[88:89]')
        for k in range(1, 10): A('s_mov_b32 s%d, 0' % (90 + k))
        A('v_mov_b32 v62, 0')
    A('v_lshrrev_b32 v1, 6, v0'); A('v_and_b32 v0, 63, v0'); A('v_readfirstlane_b32 s3, v1')
    A('v_lshlrev_b32 v2, 4, v0'); A('v_lshrrev_b32 v3, 4, v0'); A('v_and_b32 v4, 15, v0'); A('v_and_b32 v1, 7, v0')
    A('s_mov_b32 s26, %s' % SCALE); A('s_and_b32 s63, s3, 3'); A('s_mov_b32 s81, %d' % EPO)
    A('s_cmp_lt_u32 s2, 64')
    A('s_waitcnt lgkmcnt(0)')
    A('s_load_dword s7, s[60:61], s81')
    srd(16, 60, WSSZ)
    A('s_cbranch_scc1 L_bwg')

    A('s_cmp_ge_u32 s3, %d' % SW); A('s_cbranch_scc1 L_sexit')
    A('s_sub_u32 s24, s2, 64'); A('s_mul_i32 s62, s24, 43691'); A('s_lshr_b32 s62, s62, 17'); A('s_mul_i32 s25, s62, 3'); A('s_sub_u32 s6, s24, s25')
    A('s_mov_b32 s87, 0'); A('s_mov_b32 s85, 1')
    A('L_stream:')
    srd(8, 34, 0x8000000); srd(12, 36, 0x8000000)
    ch_ = (512 - 4 * (c0 + c1 + c2)) // 2
    assert 2 * ch_ + 4 * (c0 + c1 + c2) == 512
    A('s_mov_b32 s25, %d' % c0); A('s_mov_b32 s24, 0')
    for r_, (c_, o_) in enumerate([(c1, 4 * c0), (c2, 4 * (c0 + c1)), (ch_, 4 * (c0 + c1 + c2))]):
        A('s_cmp_eq_u32 s6, %d' % (r_ + 1)); A('s_cselect_b32 s25, %d, s25' % c_); A('s_cselect_b32 s24, %d, s24' % o_)
    A('s_mul_i32 s27, s25, s63'); A('s_add_u32 s24, s24, s27'); A('s_lshl_b32 s24, s24, 12'); A('s_lshl_b32 s25, s25, 12')
    A('s_lshl_b32 s65, s62, 21'); A('s_add_u32 s65, s65, s24'); A('s_add_u32 s66, s65, s25')
    SL = 64
    def issueK(s):
        for i in range(4): A('buffer_load_dwordx4 %s, v2, s[8:11], s%d offen offset:%d nt' % (vr(SL + 32 * s + 4 * i, 4), 68 + s, 1024 * i))
    def issueV(s):
        for i in range(4): A('buffer_load_dwordx4 %s, v2, s[12:15], s%d offen offset:%d nt' % (vr(SL + 32 * s + 16 + 4 * i, 4), 68 + s, 1024 * i))
    def nextoff(s):
        A('s_cmp_lt_u32 s65, s66'); A('s_cselect_b32 s%d, s65, 0x8000000' % (68 + s)); A('s_add_u32 s65, s65, 4096')
    for s in range(NS):
        nextoff(s); issueK(s); issueV(s)
    masks(5, 17)
    A('v_mov_b32 v19, 0xf149f2ca'); A('v_mov_b32 v24, 0')
    A('s_cmp_lt_u32 s2, 64'); A('s_cbranch_scc1 L_sq')
    zero_cnt('L_noz0')
    A('s_waitcnt lgkmcnt(0)'); A('s_barrier'); A(TAGADD)
    A('L_sq:')
    A('s_lshl_b32 s67, s62, 9'); A('s_add_u32 s67, s67, %d' % QX); A('v_lshlrev_b32 v21, 5, v4')
    def ql():
        A('buffer_load_dwordx4 v[32:35], v21, s[16:19], s67 offen sc1'); A('buffer_load_dwordx4 v[36:39], v21, s[16:19], s67 offen offset:16 sc1')
    gpoll(ql, lambda: tagcheck([33, 35, 37, 39]), qsl)
    for i in range(4): A('v_mov_b32 v%d, v%d' % (9 + i, 32 + 2 * i))
    for r in range(4): A('v_mov_b32 v%d, 0' % (28 + r))
    stamp(7)
    if sprio: A('s_setprio %d' % sprio)
    if stamps: A('s_mov_b32 m0, 12'); A('v_mov_b32 v62, 0')
    A('L_loop:')
    for s in range(NS):
        K = SL + 32 * s; Vv = K + 16
        if stamps and s == 0: A('s_memrealtime s[28:29]')
        if stamps and s == 1: A('s_waitcnt lgkmcnt(0)'); A('v_writelane_b32 v62, s28, m0'); A('s_add_u32 m0, m0, 1')
        A('s_cmp_ge_u32 s%d, 0x8000000' % (68 + s)); A('s_cbranch_scc1 L_sdone')
        A('s_waitcnt vmcnt(%d)' % (8 * NS - 4))
        for j in range(4):
            for i in range(4): A('v_dot2_f32_bf16 v%d, v%d, v%d, %s' % (13 + i, K + 4 * i + j, 9 + j, '0' if j == 0 else 'v%d' % (13 + i)))
        nextoff(s); issueK(s)
        allred16([13, 14, 15, 16])
        round_scale(13, 4, 17)
        A('v_max3_f32 v20, v13, v14, v19'); A('v_max3_f32 v20, v15, v16, v20')
        allred_rows(20, 21, 'v_max_f32')
        A('v_sub_f32 v22, v19, v20'); A('v_mul_f32 v23, %s, v20' % L2E); A('v_mul_f32 v22, %s, v22' % L2E); A('v_mov_b32 v19, v20'); A('v_exp_f32 v22, v22')
        A('v_mov_b32 v21, %s' % L2E)
        for i in range(4): A('v_fma_f32 v%d, v%d, v21, -v23' % (13 + i, 13 + i))
        for i in range(4): A('v_exp_f32 v%d, v%d' % (13 + i, 13 + i))
        for r in range(4): A('v_mul_f32 v%d, v22, v%d' % (28 + r, 28 + r))
        for i in range(4): A('v_cvt_pk_bf16_f32 v%d, v%d, v%d' % (48 + i, 13 + i, 13 + i))
        A('v_add_f32 v17, v13, v14'); A('v_add_f32 v18, v15, v16')
        for i in range(4):
            for r in range(4): A('v_and_b32 v%d, v%d, v%d' % (32 + 4 * i + r, 48 + i, 5 + r))
        A('v_add_f32 v17, v17, v18'); A('v_fma_f32 v24, v24, v22, v17')
        A('s_waitcnt vmcnt(%d)' % (8 * NS - 4))
        for i in range(4): A('v_mfma_f32_16x16x32_bf16 v[28:31], %s, %s, v[28:31]' % (vr(Vv + 4 * i, 4), vr(32 + 4 * i, 4)))
        issueV(s)
    A('s_branch L_loop')
    A('L_sdone:')
    stamp(8)
    allred_rows(24, 21)
    A('s_mul_i32 s27, s87, 2560'); A('s_add_u32 s27, s27, %d' % SP)
    A('v_lshlrev_b32 v21, 7, v3'); A('v_lshl_add_u32 v21, v1, 4, v21'); A('v_add_u32 v21, s27, v21')
    A('s_mul_i32 s24, s63, 640'); A('v_add_u32 v22, s24, v21'); A('s_add_u32 s24, s24, s27'); A('v_mov_b32 v23, s24'); A('v_mov_b32 v25, v24'); A('v_mov_b32 v24, v19')
    A('s_mov_b32 exec_lo, 0x00ff00ff'); A('s_mov_b32 exec_hi, 0x00ff00ff'); A('ds_write_b128 v22, v[28:31]')
    A('ds_write_b64 v23, v[24:25] offset:512')
    A('s_cmp_eq_u32 s85, 1'); A('s_cbranch_scc1 L_snn')
    for i in range(4): A('v_mov_b32 v%d, 0' % (32 + i))
    A('v_mov_b32 v36, 0xf149f2ca'); A('v_mov_b32 v37, 0'); A('ds_write_b128 v22, v[32:35] offset:1280'); A('ds_write_b64 v23, v[36:37] offset:1792')
    A('L_snn:')
    A('s_mov_b64 exec, 1'); A('s_lshl_b32 s24, s87, 2'); A('s_add_u32 s24, s24, %d' % (CNT + 32)); A('v_mov_b32 v22, s24'); A('v_mov_b32 v23, s85'); A('s_waitcnt lgkmcnt(0)')
    A('ds_add_rtn_u32 v23, v22, v23'); A('s_waitcnt lgkmcnt(0)'); A('s_mov_b64 exec, -1'); A('v_readfirstlane_b32 s24, v23')
    A('s_add_u32 s24, s24, s85'); A('s_cmp_lg_u32 s24, 4'); A('s_cbranch_scc1 L_fin')
    A('s_add_u32 s27, s27, 512'); A('v_mov_b32 v22, s27'); A('s_waitcnt vmcnt(0)')
    for w in range(SW): A('ds_read_b64 %s, v22 offset:%d' % (vr(96 + 2 * w, 2), 640 * w))
    for w in range(SW): A('ds_read_b128 %s, v21 offset:%d' % (vr(64 + 4 * w, 4), 640 * w))
    A('s_and_b32 s24, s62, 31'); A('s_lshl_b32 s24, s24, 14'); A('s_add_u32 s24, s24, %d' % PT); A('s_lshr_b32 s25, s62, 5'); A('s_lshl_b32 s25, s25, 2'); A('s_add_u32 s25, s25, s6')
    A('s_lshl_b32 s27, s25, 4'); A('s_add_u32 s27, s27, s24'); A('s_lshl_b32 s25, s25, 8'); A('s_add_u32 s24, s24, s25')
    A('v_lshlrev_b32 v44, 12, v3'); A('v_lshl_add_u32 v44, v4, 5, v44'); A('v_lshlrev_b32 v45, 12, v0')
    for i in (33, 35, 37, 39, 41, 43): A('v_mov_b32 v%d, s7' % i)
    A('s_waitcnt lgkmcnt(%d)' % SW)
    A('v_mov_b32 v40, v96')
    for w in range(1, SW): A('v_max_f32 v40, v40, v%d' % (96 + 2 * w))
    for w in range(SW): A('v_sub_f32 v%d, v%d, v40' % (96 + 2 * w, 96 + 2 * w))
    for w in range(SW): A('v_mul_f32 v%d, %s, v%d' % (96 + 2 * w, L2E, 96 + 2 * w))
    for w in range(SW): A('v_exp_f32 v%d, v%d' % (96 + 2 * w, 96 + 2 * w))
    A('v_mul_f32 v42, v96, v97')
    for w in range(1, SW): A('v_fma_f32 v42, v%d, v%d, v42' % (96 + 2 * w, 97 + 2 * w))
    A('s_waitcnt lgkmcnt(0)')
    for r in range(4): A('v_mul_f32 v%d, v96, v%d' % (32 + 2 * r, 64 + r))
    for w in range(1, SW):
        for r in range(4): A('v_fma_f32 v%d, v%d, v%d, v%d' % (32 + 2 * r, 96 + 2 * w, 64 + 4 * w + r, 32 + 2 * r))
    A('s_mov_b32 exec_lo, 0x00ff00ff'); A('s_mov_b32 exec_hi, 0x00ff00ff')
    A('buffer_store_dwordx4 v[32:35], v44, s[16:19], s24 offen sc1'); A('buffer_store_dwordx4 v[36:39], v44, s[16:19], s24 offen offset:16 sc1')
    A('s_mov_b64 exec, 15'); A('buffer_store_dwordx4 v[40:43], v45, s[16:19], s27 offen offset:2048 sc1'); A('s_mov_b64 exec, -1')
    A('s_branch L_fin')
    A('L_sexit:'); A('s_barrier'); A('s_branch L_fin')

    A('L_bwg:')
    srd(20, 32, 2048)
    A('s_and_b32 s5, s2, 31'); A('s_lshl_b32 s65, s5, 8')
    A('v_lshrrev_b32 v7, 3, v4'); A('v_lshlrev_b32 v28, 10, v7'); A('v_lshlrev_b32 v7, 8, v7'); A('v_lshl_add_u32 v7, v3, 6, v7')
    A('s_cmp_ge_u32 s2, 32'); A('s_cbranch_scc1 L_wwg')
    srd(8, 38, 0x400000)
    A('s_lshl_b32 s64, s3, 19'); A('s_add_u32 s64, s64, s65'); A('s_lshl_b32 s27, s3, 7')
    A('v_lshlrev_b32 v5, 17, v3'); A('v_lshl_add_u32 v5, v4, 4, v5'); A('v_lshl_add_u32 v28, v3, 5, v28')
    A('s_and_b32 s80, s2, 1'); A('s_lshl_b32 s79, s80, 16'); A('s_lshl_b32 s80, s80, 4')
    xload(16); wl(8, 16)
    zero_cnt('L_noz1')
    selinit()
    gemv(16, after=0)
    stamp(1)
    d_to_lds_f32(QP, 's3')
    A('s_waitcnt lgkmcnt(0)'); A('s_barrier'); A(TAGADD)
    A('s_cmp_lg_u32 s3, 0'); A('s_cbranch_scc1 L_cq')
    A('v_add_u32 v30, %d, v2' % QP)
    for w in range(8): A('ds_read_b128 %s, v30 offset:%d' % (vr(32 + 4 * w, 4), 1024 * w))
    A('v_lshrrev_b32 v30, 5, v0'); A('v_lshlrev_b32 v30, 14, v30'); A('v_and_b32 v31, 31, v0'); A('v_lshl_add_u32 v30, v31, 4, v30')
    A('s_lshl_b32 s24, s5, 9'); A('s_add_u32 s24, s24, %d' % QX)
    A('s_waitcnt lgkmcnt(0)')
    for n in (16, 8, 4):
        for i in range(n): A('v_add_f32 v%d, v%d, v%d' % (32 + i, 32 + i, 32 + n + i))
    A('v_cvt_pk_bf16_f32 v32, v32, v33'); A('v_cvt_pk_bf16_f32 v34, v34, v35'); A('v_mov_b32 v33, s7'); A('v_mov_b32 v35, s7')
    A('buffer_store_dwordx4 v[32:35], v30, s[16:19], s24 offen sc1')
    A('L_cq:'); A('s_barrier')
    stamp(2)
    A('s_lshr_b32 s87, s63, 1'); A('s_lshl_b32 s62, s87, 5'); A('s_add_u32 s62, s62, s5'); A('s_mov_b32 s6, 3'); A('s_mov_b32 s85, 2')
    A('s_cmp_lt_u32 s3, 4'); A('s_cbranch_scc1 L_b2in'); A('s_and_b32 s63, s63, 1'); A('s_branch L_stream')
    A('L_b2in:')
    if nob == 1: A('s_branch L_fin')
    A('s_setprio %d' % cprio)
    srd(8, 44, 0x1000000)
    A('s_lshr_b32 s4, s2, 5'); A('s_mov_b32 s67, s2')
    A('s_lshl_b32 s76, s2, 18'); A('s_lshl_b32 s24, s63, 14'); A('s_add_u32 s76, s76, s24')
    A('s_mov_b32 s77, %d' % CBUF); A('s_mul_i32 s78, s63, %d' % (16 * PITCH))
    def dma():
        A('s_mov_b32 m0, s78'); A('s_mov_b32 s24, s76')
        for r in range(16):
            A('buffer_load_dwordx4 v2, s[8:11], s24 offen offset:%d nt lds' % ((r & 3) * 1024))
            if r < 15:
                A('s_add_u32 m0, m0, %d' % (PITCH - 1024 if (r & 3) != 3 else PITCH + 3072))
                if (r & 3) == 3: A('s_add_u32 s24, s24, 4096')
        A('s_add_u32 s76, s76, 65536')
    dma(); A('s_add_u32 s78, s78, %d' % CBUF); dma(); A('s_sub_u32 s78, s78, %d' % CBUF)
    A('s_and_b32 s68, s63, 1'); A('s_lshr_b32 s69, s63, 1'); A('s_lshl_b32 s70, s68, 4')
    A('s_lshl_b32 s71, s68, 8'); A('s_add_u32 s71, s71, %d' % QAF); A('v_lshlrev_b32 v30, 4, v4')
    for i in range(64): A('v_mov_b32 v%d, 0' % (64 + i))
    A('v_mov_b32 v34, 0xf149f2ca'); A('v_mov_b32 v38, 0')
    gpoll(lambda: A('buffer_load_dwordx4 v[40:43], v30, s[16:19], s71 offen sc1'), lambda: tagcheck([40, 41, 42, 43]), 8)
    A('v_lshlrev_b32 v30, 10, v4'); A('v_lshl_add_u32 v30, v3, 4, v30'); A('s_lshl_b32 s24, s4, 5'); A('s_add_u32 s24, s24, s70'); A('s_lshl_b32 s24, s24, 10'); A('s_add_u32 s24, s24, %d' % QA)
    for ks in range(16): A('buffer_load_dwordx4 %s, v30, s[16:19], s24 offen offset:%d sc1' % (vr(128 + 4 * ks, 4), 64 * ks))
    A('v_mul_u32_u24 v32, %d, v4' % PITCH); A('v_lshl_add_u32 v32, v3, 4, v32')
    A('v_lshrrev_b32 v39, 2, v4'); A('v_lshl_add_u32 v39, v3, 2, v39'); A('v_mul_u32_u24 v39, %d, v39' % PITCH); A('v_and_b32 v33, 3, v4'); A('v_lshl_add_u32 v39, v33, 4, v39')
    A('s_lshl_b32 s24, s69, 9'); A('v_add_u32 v39, s24, v39')
    A('s_mov_b32 s74, 4'); A('s_mov_b32 s75, 0'); A('s_waitcnt vmcnt(0)')
    stamp(3)
    A('L_b2:')
    A('s_waitcnt vmcnt(16)'); A('s_cmp_lg_u32 s74, 1'); A('s_cbranch_scc1 L_b2w'); A('s_waitcnt vmcnt(0)'); A('L_b2w:')
    A('s_add_u32 s75, s75, 4'); hbar(CNT, 's75')
    groups = [(T, kq) for T in range(4) for kq in range(4)]
    def rdS(gi):
        T, kq = groups[gi]
        for i in range(4): A('ds_read_b128 %s, v32 offset:%d' % (vr(192 + 16 * (gi % 3) + 4 * i, 4), T * 16 * PITCH + 64 * (4 * kq + i)))
    rdS(0); rdS(1)
    for gi, (T, kq) in enumerate(groups):
        if gi + 2 < len(groups): rdS(gi + 2)
        A('s_waitcnt lgkmcnt(%d)' % (4 * min(2, len(groups) - 1 - gi)))
        for i in range(4):
            ks = 4 * kq + i
            A('v_mfma_f32_16x16x32_bf16 %s, %s, %s, %s' % (vr(48 + 4 * T, 4), vr(192 + 16 * (gi % 3) + 4 * i, 4), vr(128 + 4 * ks, 4), '0' if ks == 0 else vr(48 + 4 * T, 4)))
    g2 = [(P, up) for P in range(8) for up in range(2)]
    def rdP(gi):
        P, up = g2[gi]
        for i in range(4): A('ds_read_b64_tr_b16 %s, v39 offset:%d' % (vr(192 + 8 * (gi % 3) + 2 * i, 2), i * 16 * PITCH + 64 * P + 8 * up))
    rdP(0); rdP(1)
    round_scale(48, 16, 40)
    A('v_max3_f32 v35, v48, v49, v34')
    for i in range(50, 64, 2): A('v_max3_f32 v35, v35, v%d, v%d' % (i, i + 1))
    allred_rows(35, 36, 'v_max_f32')
    A('v_sub_f32 v37, v34, v35'); A('v_mul_f32 v37, %s, v37' % L2E); A('v_exp_f32 v37, v37'); A('v_mov_b32 v34, v35')
    A('v_mul_f32 v35, %s, v35' % L2E); A('v_mov_b32 v36, %s' % L2E)
    for i in range(16): A('v_fma_f32 v%d, v%d, v36, -v35' % (48 + i, 48 + i))
    for i in range(16): A('v_exp_f32 v%d, v%d' % (48 + i, 48 + i))
    for i in range(64): A('v_mul_f32 v%d, v37, v%d' % (64 + i, 64 + i))
    for i in range(8): A('v_cvt_pk_bf16_f32 v%d, v%d, v%d' % (40 + i, 48 + 2 * i, 49 + 2 * i))
    for n in (8, 4, 2, 1):
        for i in range(n): A('v_add_f32 v%d, v%d, v%d' % (48 + i, 48 + i, 48 + n + i))
    A('v_fma_f32 v38, v38, v37, v48')
    for gi, (P, up) in enumerate(g2):
        if gi + 2 < len(g2): rdP(gi + 2)
        A('s_waitcnt lgkmcnt(%d)' % (4 * min(2, len(g2) - 1 - gi)))
        acc = 64 + 8 * P + 4 * up
        for u in range(2): A('v_mfma_f32_16x16x32_bf16 %s, %s, %s, %s' % (vr(acc, 4), vr(192 + 8 * (gi % 3) + 4 * u, 4), vr(40 + 4 * u, 4), vr(acc, 4)))
    A('s_sub_u32 s74, s74, 1'); A('s_cmp_eq_u32 s74, 0'); A('s_cbranch_scc1 L_b2e')
    A('v_add_u32 v32, s77, v32'); A('v_add_u32 v39, s77, v39')
    A('s_cmp_eq_u32 s74, 1'); A('s_cbranch_scc1 L_b2')
    A('s_add_u32 s75, s75, 4'); hbar(CNT, 's75')
    dma()
    A('s_add_u32 s78, s78, s77'); A('s_sub_u32 s77, 0, s77')
    A('s_branch L_b2')
    A('L_b2e:')
    allred_rows(38, 36)
    A('v_lshlrev_b32 v36, 16, v4'); A('v_lshl_add_u32 v36, v3, 4, v36')
    A('s_lshl_b32 s72, s70, 16'); A('s_lshl_b32 s24, s69, 15'); A('s_add_u32 s72, s72, s24'); A('s_lshl_b32 s24, s67, 8'); A('s_add_u32 s72, s72, s24'); A('s_add_u32 s72, s72, %d' % CLP); A('s_add_u32 s73, s72, 16384')
    for P in range(8):
        for i in range(4): A('v_cvt_pk_bf16_f32 v%d, v%d, v%d' % (192 + 4 * P + i, 64 + 8 * P + 2 * i, 65 + 8 * P + 2 * i))
        A('buffer_store_dwordx4 %s, v36, s[16:19], s%d offen offset:%d sc1' % (vr(192 + 4 * P, 4), 72 + (P >> 2), 64 * (P & 3)))
    A('v_mov_b32 v40, v34'); A('v_mov_b32 v41, s7'); A('v_mov_b32 v42, v38'); A('v_mov_b32 v43, s7'); A('v_lshlrev_b32 v36, 11, v4')
    A('s_lshl_b32 s24, s70, 11'); A('s_lshl_b32 s25, s69, 10'); A('s_add_u32 s24, s24, s25'); A('s_lshl_b32 s25, s67, 4'); A('s_add_u32 s24, s24, s25'); A('s_add_u32 s24, s24, %d' % CLF)
    A('s_mov_b64 exec, 0xffff'); A('s_waitcnt vmcnt(0)')
    A('buffer_store_dwordx4 v[40:43], v36, s[16:19], s24 offen sc1'); A('s_mov_b64 exec, -1')
    stamp(4)
    A('s_cmp_ge_u32 s2, 32'); A('s_cbranch_scc1 L_wtail')
    A('s_branch L_fin')

    A('L_wwg:')
    A('s_lshl_b32 s64, s63, 20'); A('s_add_u32 s64, s64, s65'); A('s_lshl_b32 s27, s63, 8')
    A('v_lshlrev_b32 v5, 18, v3'); A('v_lshl_add_u32 v5, v4, 4, v5'); A('v_lshl_add_u32 v28, v3, 6, v28')
    def wregs():
        A('v_lshlrev_b32 v6, 15, v3'); A('v_lshl_add_u32 v6, v4, 4, v6')
        A('v_lshrrev_b32 v47, 3, v4'); A('v_lshlrev_b32 v7, 8, v47'); A('v_lshl_add_u32 v7, v3, 6, v7')
        A('v_lshlrev_b32 v47, 7, v47'); A('v_lshl_add_u32 v47, v1, 4, v47'); A('v_lshl_add_u32 v47, v3, 14, v47')
        A('s_lshl_b32 s77, s63, 16'); A('s_add_u32 s77, s77, s65'); A('s_add_u32 s77, s77, %d' % YY)
    wregs()
    A('s_and_b32 s80, s2, 3'); A('s_lshl_b32 s79, s80, 16'); A('s_lshl_b32 s80, s80, 4')
    A('s_lshl_b32 s86, s5, 17'); A('s_lshl_b32 s24, s63, 8'); A('s_add_u32 s86, s86, s24')
    A('s_cmp_ge_u32 s3, 4'); A('s_cbranch_scc1 L_setb')
    srd(8, 46, 0x400000)
    A('s_setprio 3')
    xload(); wl(8)
    zero_cnt('L_noz2')
    selinit()
    gemv(32, after=0)
    stamp(1)
    d_to_lds_f32(QP, 's63')
    A('s_waitcnt lgkmcnt(0)'); A('s_barrier'); A(TAGADD)
    A('s_setprio 0')
    if wqa: A('v_mov_b32 v29, %d' % (CNT + 24)); ldspoll(29, 4, 4)
    A('s_branch L_b2in')
    A('L_wtail:')
    A('s_setprio 0')
    wregs()
    srd(8, 40, 0x400000); A('s_mov_b32 s24, s86'); wload1k(8)
    selinit()
    A('s_add_u32 s77, s77, %d' % YPH)
    A('s_lshl_b32 s71, s5, 14'); A('s_lshl_b32 s24, s63, 12'); A('s_add_u32 s71, s71, s24'); A('s_add_u32 s71, s71, %d' % PT)
    A('v_lshlrev_b32 v46, 4, v3')
    A('v_and_b32 v44, 1, v4'); A('v_lshlrev_b32 v44, 5, v44'); A('v_and_b32 v43, 14, v4'); A('v_add_u32 v44, v44, v43'); A('s_lshl_b32 s24, s63, 6'); A('s_add_u32 s24, s24, %d' % XA); A('v_add_u32 v44, s24, v44')
    def ptl():
        for b in range(2):
            A('buffer_load_dwordx4 %s, v2, s[16:19], s71 offen offset:%d sc1' % (vr(48 + 8 * b, 4), 1024 * b)); A('buffer_load_dwordx4 %s, v46, s[16:19], s71 offen offset:%d sc1' % (vr(52 + 8 * b, 4), 2048 + 64 * b))
    def ptbody():
        for b in range(2):
            d0 = 48 + 8 * b; d1 = d0 + 2; m = d0 + 4; l = d0 + 6; M = d0 + 1; t = d0 + 3
            A('v_mov_b32 v%d, v%d' % (M, m)); allred_rows(M, t, 'v_max_f32')
            A('v_sub_f32 v%d, v%d, v%d' % (m, m, M)); A('v_mul_f32 v%d, %s, v%d' % (m, L2E, m)); A('v_exp_f32 v%d, v%d' % (m, m))
            for x in (l, d0, d1): A('v_mul_f32 v%d, v%d, v%d' % (x, m, x))
            for x in (l, d0, d1): allred_rows(x, t)
            A('v_rcp_f32 v%d, v%d' % (l, l)); A('v_mul_f32 v%d, v%d, v%d' % (d0, l, d0)); A('v_mul_f32 v%d, v%d, v%d' % (d1, l, d1))
            A('v_cvt_pk_bf16_f32 v%d, v%d, v%d' % (d0, d0, d1))
            A('ds_write_b16 v44, v%d offset:%d' % (d0, 256 * b)); A('ds_write_b16_d16_hi v44, v%d offset:%d' % (d0, 256 * b + 16))
    gpoll(ptl, lambda: tagcheck(list(range(49, 64, 2))), ptsl, body=ptbody)
    stamp(5)
    hbar(CNT + 16, 4)
    A('v_add_u32 v30, %d, v7' % XA)
    for k in range(4): A('ds_read_b128 %s, v30 offset:%d' % (vr(XR + 4 * k, 4), 16 * k))
    A('s_waitcnt lgkmcnt(0)')
    A('L_gpub:')
    gemv(32, after=0)
    for r in range(4): A('v_mov_b32 v%d, s7' % (33 + 2 * r))
    for r in range(4): A('v_mov_b32 v%d, v%d' % (32 + 2 * r, DD + r))
    A('s_add_u32 s78, s77, 8192')
    A('buffer_store_dwordx4 v[32:35], v47, s[16:19], s77 offen sc1'); A('buffer_store_dwordx4 v[36:39], v47, s[16:19], s78 offen sc1')
    A('s_cmp_eq_u32 s3, 4'); A('s_cbranch_scc1 L_final')
    A('s_cmp_lg_u32 s3, 0'); A('s_cbranch_scc1 L_fin6')
    ldsinc(CNT + 20)
    A('L_fin6:')
    stamp(6)
    A('s_branch L_fin')
    A('L_setb:')
    srd(8, 48, 0x400000)
    A('s_setprio %d' % min(bprio, 2))
    wl(8, r=False)
    selinit()
    A('s_waitcnt lgkmcnt(0)'); A('s_barrier'); A(TAGADD)
    A('v_lshlrev_b32 v30, 5, v4'); A('v_add_u32 v30, %d, v30' % QP)
    for b in range(2):
        for w in range(4):
            for k in range(2): A('ds_read_b128 %s, v30 offset:%d' % (vr(48 + 32 * b + 8 * w + 4 * k, 4), 1024 * w + 512 * b + 16 * k))
    A('s_waitcnt lgkmcnt(0)')
    for b in range(2):
        t0 = 48 + 32 * b
        for i in range(8):
            A('v_add_f32 v%d, v%d, v%d' % (t0 + i, t0 + i, t0 + 8 + i)); A('v_add_f32 v%d, v%d, v%d' % (t0 + 16 + i, t0 + 16 + i, t0 + 24 + i))
        for i in range(8): A('v_add_f32 v%d, v%d, v%d' % (t0 + i, t0 + i, t0 + 16 + i))
        for i in range(4): A('v_cvt_pk_bf16_f32 v%d, v%d, v%d' % (32 + 4 * b + i, t0 + 2 * i, t0 + 2 * i + 1))
    stamp(1)
    A('s_lshl_b32 s24, s5, 10'); A('s_add_u32 s24, s24, s27'); A('s_add_u32 s72, s24, %d' % QA); A('s_add_u32 s73, s72, 32768'); A('v_lshlrev_b32 v31, 6, v3')
    for t8 in range(4):
        if t8 == 0: A('s_waitcnt vmcnt(0)')
        for b in range(2):
            for j in range(4):
                for t in range(8): A('v_dot2_f32_bf16 v%d, v%d, v%d, %s' % (48 + 8 * b + t, WB + 4 * (8 * t8 + t) + j, 32 + 4 * b + j, '0' if j == 0 else 'v%d' % (48 + 8 * b + t)))
        allred16(list(range(48, 64)))
        for i in range(8): A('v_cvt_pk_bf16_f32 v%d, v%d, v%d' % (64 + 8 * t8 + i, 48 + 2 * i, 49 + 2 * i))
        A('s_mov_b32 exec_lo, 0x00010001'); A('s_mov_b32 exec_hi, 0x00010001')
        for b in range(2): A('buffer_store_dwordx4 %s, v31, s[16:19], s%d offen offset:%d sc1' % (vr(64 + 8 * t8 + 4 * b, 4), 72 + b, 16 * t8))
        A('s_mov_b64 exec, -1')
    A('s_lshl_b32 s24, s5, 4'); A('s_lshl_b32 s25, s63, 2'); A('s_add_u32 s24, s24, s25'); A('s_add_u32 s24, s24, %d' % QAF)
    A('v_mov_b32 v28, s7'); A('s_mov_b64 exec, 1'); A('s_waitcnt vmcnt(0)')
    A('buffer_store_dword v28, off, s[16:19], s24 sc1'); A('s_mov_b64 exec, -1')
    ldsinc(CNT + 24)
    stamp(2)
    if nob == 1: A('s_branch L_fin')
    A('s_setprio %d' % bprio)
    if uvsl: A('s_sleep %d' % uvsl)
    srd(8, 50, 0x400000)
    wl(8, r=False)
    A('s_lshl_b32 s71, s5, 11'); A('s_lshr_b32 s24, s63, 1'); A('s_lshl_b32 s24, s24, 10'); A('s_add_u32 s71, s71, s24'); A('s_add_u32 s71, s71, %d' % CLF)
    gpoll(lambda: A('buffer_load_dwordx4 v[32:35], v2, s[16:19], s71 offen sc1'), lambda: tagcheck([33, 35]), 16)
    stamp(3)
    A('v_lshlrev_b32 v30, 12, v3'); A('v_lshl_add_u32 v30, v4, 4, v30')
    A('s_lshl_b32 s24, s5, 2'); A('s_add_u32 s24, s24, s63'); A('s_lshl_b32 s24, s24, 14'); A('s_add_u32 s24, s24, %d' % CLP)
    for t in range(16): A('buffer_load_dwordx4 %s, v30, s[16:19], s24 offen offset:%d sc1' % (vr(48 + 4 * t, 4), 256 * t))
    A('v_mov_b32 v36, v32'); allred16([36], 'v_max_f32'); allred_rows(36, 37, 'v_max_f32', (16,))
    A('v_sub_f32 v32, v32, v36'); A('v_mul_f32 v32, %s, v32' % L2E); A('v_exp_f32 v32, v32'); A('v_mul_f32 v36, v32, v34')
    allred16([36]); allred_rows(36, 37, 'v_add_f32', (16,))
    A('v_rcp_f32 v36, v36'); A('v_mul_f32 v32, v32, v36'); A('v_cvt_pk_bf16_f32 v32, v32, v32')
    A('s_lshl_b32 s24, s3, 9'); A('s_add_u32 s74, s24, %d' % XB)
    A('v_lshlrev_b32 v30, 1, v0'); A('v_add_u32 v30, s74, v30'); A('ds_write_b16 v30, v32'); A('v_lshlrev_b32 v30, 5, v3'); A('v_add_u32 v30, s74, v30'); A('s_waitcnt lgkmcnt(0)')
    for k in range(2): A('ds_read_b128 %s, v30 offset:%d' % (vr(XR + 4 * k, 4), 16 * k))
    A('v_lshrrev_b32 v30, 3, v4'); A('v_lshrrev_b32 v31, 1, v3'); A('v_cmp_eq_u32 vcc, v30, v31')
    A('s_waitcnt lgkmcnt(0)')
    for i in range(8): A('v_cndmask_b32 v%d, 0, v%d, vcc' % (XR + i, XR + i))
    gemv(16, base=48, after=0)
    A('v_cvt_pk_bf16_f32 v28, v%d, v%d' % (DD, DD + 1)); A('v_cvt_pk_bf16_f32 v29, v%d, v%d' % (DD + 2, DD + 3))
    A('v_add_u32 v30, s74, v7'); A('v_lshl_add_u32 v31, v1, 1, v30')
    A('ds_write_b16 v31, v28'); A('ds_write_b16_d16_hi v31, v28 offset:16'); A('ds_write_b16 v31, v29 offset:32'); A('ds_write_b16_d16_hi v31, v29 offset:48')
    A('s_waitcnt lgkmcnt(0)')
    for k in range(4): A('ds_read_b128 %s, v30 offset:%d' % (vr(XR + 4 * k, 4), 16 * k))
    A('s_waitcnt lgkmcnt(0)')
    gemv(32)
    d_to_lds_f32(CTXP, 's63')
    srd(8, 52, 0x400000)
    A('s_mov_b32 s24, s86'); wload1k(8)
    hbar(CNT + 12, 4)
    A('v_lshlrev_b32 v30, 1, v7'); A('v_add_u32 v30, %d, v30' % CTXP)
    for w in range(4):
        for k in range(8): A('ds_read_b128 %s, v30 offset:%d' % (vr((48, 80, 80, 80)[w] + 4 * k, 4), 1024 * w + 16 * k))
        if w >= 1:
            A('s_waitcnt lgkmcnt(0)')
            for i in range(32): A('v_add_f32 v%d, v%d, v%d' % (48 + i, 48 + i, 80 + i))
    for i in range(16): A('v_cvt_pk_bf16_f32 v%d, v%d, v%d' % (XR + i, 48 + 2 * i, 49 + 2 * i))
    stamp(4)
    A('s_branch L_gpub')
    A('L_final:')
    srd(8, 54, 1024)
    A('buffer_load_dwordx4 v[32:35], v2, s[20:23], 0 offen'); A('buffer_load_dwordx4 v[36:39], v2, s[20:23], 0 offen offset:1024'); A('buffer_load_dwordx4 v[40:43], v2, s[8:11], 0 offen')
    A('s_lshl_b32 s77, s5, 13'); A('s_add_u32 s77, s77, %d' % YY); A('s_add_u32 s78, s77, 4096'); A('s_mov_b32 s75, 0'); A('v_mov_b32 v44, %d' % (CNT + 12))
    A('s_waitcnt vmcnt(0)')
    for i in range(4): A('v_lshlrev_b32 v%d, 16, v%d' % (64 + 2 * i, 40 + i)); A('v_and_b32 v%d, 0xffff0000, v%d' % (65 + 2 * i, 40 + i))
    for b in range(2):
        s0 = 48 + 8 * b
        for i in range(4): A('v_lshlrev_b32 v%d, 16, v%d' % (s0 + 2 * i, 32 + 4 * b + i)); A('v_and_b32 v%d, 0xffff0000, v%d' % (s0 + 1 + 2 * i, 32 + 4 * b + i))
        for i in range(8): A('v_mul_f32 v%d, v%d, v%d' % (s0 + i, s0 + i, 64 + i))
        for i in range(4): A('v_cvt_pk_bf16_f32 v%d, v%d, v%d' % (72 + i, s0 + 2 * i, s0 + 1 + 2 * i))
        for i in range(4): A('v_lshlrev_b32 v%d, 16, v%d' % (s0 + 2 * i, 72 + i)); A('v_and_b32 v%d, 0xffff0000, v%d' % (s0 + 1 + 2 * i, 72 + i))
        for n in (4, 2, 1):
            for i in range(n): A('v_add_f32 v%d, v%d, v%d' % (s0 + i, s0 + i, s0 + n + i))
        allred16([s0]); allred_rows(s0, s0 + 1)
    A('v_and_b32 v28, 8, v0'); A('v_cmp_eq_u32 vcc, 0, v28'); A('v_cndmask_b32 v48, v56, v48, vcc')
    A('v_cvt_pk_bf16_f32 v48, v48, v48'); A('v_lshlrev_b32 v48, 16, v48'); A('v_mul_f32 v48, 0xbfb8aa3b, v48'); A('v_exp_f32 v48, v48'); A('v_add_f32 v48, 1.0, v48'); A('v_rcp_f32 v48, v48')
    A('v_cvt_pk_bf16_f32 v48, v48, v48'); A('v_lshlrev_b32 v40, 16, v48'); A('v_sub_f32 v41, 1.0, v40'); A('v_cvt_pk_bf16_f32 v41, v41, v41'); A('v_lshlrev_b32 v41, 16, v41')
    A('L_fph:')
    ldspoll(44, 1, 4)
    def yl():
        for k in range(8): A('buffer_load_dwordx4 %s, v2, s[16:19], s%d offen offset:%d sc1' % (vr(48 + 4 * k, 4), 77 + (k >> 2), 1024 * (k & 3)))
    gpoll(yl, lambda: tagcheck(list(range(49, 80, 2))), 2)
    for n in (16, 8, 4):
        for i in range(0, n, 2): A('v_add_f32 v%d, v%d, v%d' % (48 + i, 48 + i, 48 + n + i))
    allred_rows(48, 36); allred_rows(50, 36)
    A('v_cvt_pk_bf16_f32 v32, v48, v50'); A('v_and_b32 v33, 0xffff0000, v32'); A('v_lshlrev_b32 v32, 16, v32')
    A('v_mul_f32 v32, v41, v32'); A('v_mul_f32 v33, v41, v33'); A('v_cvt_pk_bf16_f32 v32, v32, v33'); A('v_and_b32 v33, 0xffff0000, v32'); A('v_lshlrev_b32 v32, 16, v32')
    A('s_cmp_lg_u32 s75, 0'); A('s_cbranch_scc1 L_fout')
    stamp(5)
    A('v_mov_b32 v42, v32'); A('v_mov_b32 v43, v33'); A('v_mov_b32 v41, v40'); A('v_mov_b32 v44, %d' % (CNT + 20)); A('s_mov_b32 s75, 1'); A('s_add_u32 s77, s77, %d' % YPH); A('s_add_u32 s78, s78, %d' % YPH); A('s_branch L_fph')
    A('L_fout:')
    A('v_add_f32 v32, v32, v42'); A('v_add_f32 v33, v33, v43'); A('v_cvt_pk_bf16_f32 v32, v32, v33')
    srd(8, 56, 2048)
    A('s_lshl_b32 s24, s5, 5'); A('v_lshrrev_b32 v33, 3, v4'); A('v_lshlrev_b32 v33, 10, v33'); A('v_lshl_add_u32 v33, v1, 1, v33')
    A('s_mov_b64 exec, 0xffff'); A('buffer_store_short v32, v33, s[8:11], s24 offen'); A('buffer_store_short_d16_hi v32, v33, s[8:11], s24 offen offset:16')
    A('s_cmp_lg_u32 s5, 0'); A('s_cbranch_scc1 L_fe')
    A('s_mov_b64 exec, 1'); A('s_sub_u32 s24, s7, 0x9e3779b0'); A('v_mov_b32 v1, s24'); A('buffer_store_dword v1, off, s[16:19], s81 sc0 sc1')
    A('L_fe:'); A('s_mov_b64 exec, -1')
    stamp(6)
    A('L_fin:')
    if stamps:
        A('s_memrealtime s[28:29]'); A('s_getreg_b32 s24, hwreg(HW_REG_XCC_ID)'); A('s_mov_b64 exec, -1'); A('s_waitcnt lgkmcnt(0)')
        A('v_mov_b32 v4, s88'); A('v_mov_b32 v5, s89'); A('v_mov_b32 v6, s28'); A('v_mov_b32 v7, s24'); A('v_mov_b32 v8, 0'); A('v_mov_b32 v9, v62')
        for k in range(1, 10): A('v_writelane_b32 v9, s%d, %d' % (90 + k, k))
        A('v_writelane_b32 v9, s28, 10')
        A('s_lshl_b32 s25, s2, 3'); A('s_add_u32 s25, s25, s3'); A('s_lshl_b32 s25, s25, 4'); A('s_lshl_b32 s24, s25, 4'); A('s_add_u32 s24, s24, 0x40000'); A('v_lshlrev_b32 v10, 2, v0')
        A('buffer_store_dword v9, v10, s[16:19], s24 offen'); A('s_mov_b64 exec, 1'); A('buffer_store_dwordx4 v[4:7], v8, s[16:19], s25 offen')
    A('L_end:')
    body = fix(L)
    H = ['; generated by work/gen3.py', '; @launch grid=(256,1,1) block=(512,1,1) lds=%d' % LDSSZ,
         '.amdgcn_target "amdgcn-amd-amdhsa--gfx950"', '.text', '.globl %s_kernel' % KN, '.p2align 8', '.type %s_kernel,@function' % KN, '%s_kernel:' % KN]
    T = ['s_endpgm', '.section .rodata,"a"', '.p2align 6', '.amdhsa_kernel %s_kernel' % KN, '  .amdhsa_next_free_vgpr 256', '  .amdhsa_next_free_sgpr 102', '  .amdhsa_accum_offset 256',
         '  .amdhsa_group_segment_fixed_size 0', '  .amdhsa_kernarg_size 120', '  .amdhsa_user_sgpr_count 2', '  .amdhsa_user_sgpr_kernarg_segment_ptr 1', '  .amdhsa_system_sgpr_workgroup_id_x 1', '.end_amdhsa_kernel']
    return '\n'.join(H + [('' if l.endswith(':') else '  ') + l for l in body] + T) + '\n'
if __name__ == '__main__':
    out = sys.argv[1]; kw = {}
    for a in sys.argv[2:]:
        k, v = a.split('='); kw[k] = int(v) if v.lstrip('-').isdigit() else v
    open(out, 'w').write(gen(**kw))
```

```python
import sys
from asmlib import fix
KN = 'gated_mix__mha_block_cached__compressed_kv_cla__decode'
WSB = 0x100000
EPO = WSB; QX = WSB + 0x1000; QAF = WSB + 0xA000; TIK = WSB + 0xB000; QA = WSB + 0x10000; CLF = WSB + 0x20000
PT = WSB + 0x40000; YY = WSB + 0xC0000; YPH = 0x40000; CLP = WSB + 0x200000
WSSZ = 0x800000
PITCH = 1056; CBUF = 64 * PITCH
QP = 135168; CTXP = QP + 4096; XB = QP + 8192; XA = XB + 4096; SP = XA + 512; CNT = SP + 5120; LDSSZ = CNT + 256
L2E = '0x3fb8aa3b'; SCALE = '0x3db504f3'
BOUND = 50000
def gen(NS=5, stamps=False, wf='nt', rot=1, c0=39, c1=39, c2=38, uvsl=127, nob=0, qsl=4, ptsl=6, sprio=0, SW=4, wqa=1, cprio=3, bprio=3, tik=1, gmap=1, ysl=4, trot=0, R=5, nc=16, il=1, dord=1, uvg=8, nw=0):
    L = []; A = L.append
    cnt = [0]
    def lab(p):
        cnt[0] += 1; return 'L_%s%d' % (p, cnt[0])
    def srd(d, p, size):
        A('s_mov_b32 s%d, s%d' % (d, p)); A('s_mov_b32 s%d, s%d' % (d + 1, p + 1)); A('s_mov_b32 s%d, 0x%x' % (d + 2, size)); A('s_mov_b32 s%d, 0x20000' % (d + 3))
    def vr(a, n): return 'v[%d:%d]' % (a, a + n - 1)
    def stamp(k):
        if stamps:
            A('s_memrealtime s[28:29]'); A('s_waitcnt lgkmcnt(0)'); A('s_mov_b32 s%d, s28' % (90 + k))
    def allred16(regs, op='v_add_f32'):
        for ror in (8, 4, 2, 1):
            for r in regs: A('%s_dpp v%d, v%d, v%d row_ror:%d row_mask:0xf bank_mask:0xf' % (op, r, r, r, ror))
    def allred_rows(r, t, op='v_add_f32', sws=(16, 32)):
        for sw in sws:
            A('v_mov_b32 v%d, v%d' % (t, r)); A('v_permlane%d_swap_b32 v%d, v%d' % (sw, r, t)); A('%s v%d, v%d, v%d' % (op, r, r, t))
    def round_scale(s0, n, t0):
        for ph in range(2):
            for i in range(0, n, 2): A('v_cvt_pk_bf16_f32 v%d, v%d, v%d' % (t0 + i // 2, s0 + i, s0 + i + 1))
            for i in range(0, n, 2):
                A('v_lshlrev_b32 v%d, 16, v%d' % (s0 + i, t0 + i // 2)); A('v_and_b32 v%d, 0xffff0000, v%d' % (s0 + i + 1, t0 + i // 2))
            if ph == 0:
                for i in range(n): A('v_mul_f32 v%d, s26, v%d' % (s0 + i, s0 + i))
    def masks(d, t, n=4):
        A('v_and_b32 v%d, 1, v%d' % (t, n)); A('v_lshlrev_b32 v%d, 4, v%d' % (t, t)); A('v_mov_b32 v%d, 0xffff' % (t + 1)); A('v_lshlrev_b32 v%d, v%d, v%d' % (t, t, t + 1)); A('v_lshrrev_b32 v%d, 1, v%d' % (t + 1, n))
        for r in range(4): A('v_cmp_eq_u32 vcc, %d, v%d' % (r, t + 1)); A('v_cndmask_b32 v%d, 0, v%d, vcc' % (d + r, t))
    def ldspoll(addr_v, target, sleep=1):
        l = lab('lp'); d = lab('lpd')
        A('s_mov_b32 s30, %d' % BOUND); A(l + ':')
        A('ds_read_b32 v28, v%d' % addr_v); A('s_waitcnt lgkmcnt(0)'); A('v_readfirstlane_b32 s31, v28')
        A('s_cmp_ge_u32 s31, %s' % target); A('s_cbranch_scc1 ' + d); A('s_sleep %d' % sleep)
        A('s_sub_u32 s30, s30, 1'); A('s_cmp_lg_u32 s30, 0'); A('s_cbranch_scc1 ' + l); A(d + ':')
    def ldsinc(addr):
        A('v_mov_b32 v29, %s' % addr); A('v_mov_b32 v28, 1'); A('s_waitcnt lgkmcnt(0)')
        A('s_mov_b64 exec, 1'); A('ds_add_u32 v29, v28'); A('s_mov_b64 exec, -1')
    def hbar(addr, target):
        ldsinc(addr); ldspoll(29, target)
    def gpoll(loads, check, sleep, body=None):
        l = lab('gp'); d = lab('gpd')
        A('s_mov_b32 s30, %d' % BOUND); A(l + ':')
        loads(); A('s_waitcnt vmcnt(0)'); check()
        if body:
            A('s_mov_b64 s[82:83], vcc'); body(); A('s_cmp_eq_u64 s[82:83], -1')
        else: A('s_cmp_eq_u64 vcc, -1')
        A('s_cbranch_scc1 ' + d); A('s_sleep %d' % sleep)
        A('s_sub_u32 s30, s30, 1'); A('s_cmp_lg_u32 s30, 0'); A('s_cbranch_scc1 ' + l); A(d + ':')
    def tagcheck(tr):
        A('v_mov_b32 v28, v%d' % tr[0]); A('v_mov_b32 v29, v%d' % tr[0]); rest = tr[1:]
        while rest:
            a = rest[0]; b = rest[1] if len(rest) > 1 else rest[0]; rest = rest[2:]
            A('v_min3_u32 v28, v28, v%d, v%d' % (a, b)); A('v_max3_u32 v29, v29, v%d, v%d' % (a, b))
        A('v_cmp_eq_u32 s[24:25], s7, v28'); A('v_cmp_eq_u32 vcc, s7, v29'); A('s_and_b64 vcc, vcc, s[24:25]')
    WB = 128; XR = 112; SEL = 8; BR = 16; DD = 24
    def wl(sr, NL=32, voff=5, r=True):
        A('s_mov_b32 s25, %s' % ('s79' if (rot and r) else '0'))
        for t in range(NL):
            A('s_add_u32 s24, s64, s25')
            A('buffer_load_dwordx4 %s, v%d, s[%d:%d], s24 offen %s' % (vr(WB + 4 * t, 4), voff, sr, sr + 3, wf))
            if t < NL - 1: A('s_add_u32 s25, s25, 8192'); A('s_and_b32 s25, s25, 0x%x' % (NL * 8192 - 1))
    def xload(NL=32):
        for k in range(NL // 8):
            A('s_add_u32 s24, %s, %d' % ('s80' if rot else '0', 16 * k)); A('s_and_b32 s24, s24, %d' % (2 * NL - 1)); A('s_add_u32 s24, s24, s27')
            A('buffer_load_dwordx4 %s, v28, s[20:23], s24 offen' % vr(XR + 4 * k, 4))
    def wload1k(sr, sig=0):
        for t in range(32):
            if sig and t == 28: A('s_waitcnt vmcnt(28)'); ldsinc(CNT + 8)
            A('buffer_load_dwordx4 %s, v6, s[%d:%d], s24 offen offset:%d %s' % (vr(WB + 4 * t, 4), sr, sr + 3, (t & 3) * 1024, wf))
            if (t & 3) == 3 and t < 31: A('s_add_u32 s24, s24, 4096')
    def gemv(NL, base=WB, after=None):
        for t in range(NL):
            if after is not None and t % 4 == 0: A('s_waitcnt vmcnt(%d)' % min(63, after + NL - t - 4))
            b = BR + 4 * (t & 1)
            for r in range(4): A('v_perm_b32 v%d, v%d, v%d, v%d' % (b + r, XR + t // 2, XR + t // 2, SEL + 4 * (t & 1) + r))
            A('v_mfma_f32_16x16x32_bf16 %s, %s, %s, %s' % (vr(DD, 4), vr(base + 4 * t, 4), vr(b, 4), '0' if t == 0 else vr(DD, 4)))
    def selinit():
        masks(BR, 28, n=1)
        A('v_mov_b32 v28, 0x0c0c0c0c'); A('s_mov_b32 s24, 0x01000100'); A('s_mov_b32 s25, 0x03020302')
        for r in range(4): A('v_bfi_b32 v%d, v%d, s24, v28' % (SEL + r, BR + r)); A('v_bfi_b32 v%d, v%d, s25, v28' % (SEL + 4 + r, BR + r))
    def d_to_lds_f32(base, wr):
        A('v_lshlrev_b32 v30, 1, v7'); A('v_lshl_add_u32 v30, v1, 2, v30'); A('s_lshl_b32 s24, %s, 10' % wr); A('s_add_u32 s24, s24, %d' % base); A('v_add_u32 v30, s24, v30')
        for r in range(4): A('ds_write_b32 v30, v%d offset:%d' % (DD + r, 32 * r))
    def zero_cnt(l):
        A('s_cmp_lg_u32 s3, 0'); A('s_cbranch_scc1 ' + l)
        A('v_mov_b32 v28, %d' % CNT); A('v_lshl_add_u32 v28, v4, 2, v28'); A('v_mov_b32 v29, 0'); A('ds_write_b32 v28, v29'); A(l + ':')
    TAGADD = 's_add_u32 s7, s7, 0x9e3779b1'

    A('s_cmp_ge_u32 s2, 256'); A('s_cbranch_scc1 L_end')
    A('s_load_dwordx16 s[32:47], s[0:1], 0'); A('s_load_dwordx8 s[48:55], s[0:1], 64'); A('s_load_dwordx4 s[56:59], s[0:1], 96'); A('s_load_dwordx2 s[60:61], s[0:1], 112')
    if stamps:
        A('s_memrealtime s[88:89]')
        for k in range(1, 10): A('s_mov_b32 s%d, 0' % (90 + k))
        A('v_mov_b32 v62, 0')
    A('v_lshrrev_b32 v1, 6, v0'); A('v_and_b32 v0, 63, v0'); A('v_readfirstlane_b32 s3, v1')
    A('v_lshlrev_b32 v2, 4, v0'); A('v_lshrrev_b32 v3, 4, v0'); A('v_and_b32 v4, 15, v0'); A('v_and_b32 v1, 7, v0')
    A('s_mov_b32 s26, %s' % SCALE); A('s_and_b32 s63, s3, 3'); A('s_mov_b32 s81, %d' % EPO)
    A('s_cmp_lt_u32 s2, 64')
    A('s_waitcnt lgkmcnt(0)')
    A('s_load_dword s7, s[60:61], s81')
    srd(16, 60, WSSZ)
    A('s_cbranch_scc1 L_bwg')

    A('s_cmp_ge_u32 s3, %d' % SW); A('s_cbranch_scc1 L_sexit')
    A('s_sub_u32 s24, s2, 64'); A('s_mul_i32 s62, s24, 43691'); A('s_lshr_b32 s62, s62, 17'); A('s_mul_i32 s25, s62, 3'); A('s_sub_u32 s6, s24, s25')
    if gmap: A('s_and_b32 s62, s24, 63'); A('s_lshr_b32 s6, s24, 6')
    A('s_mov_b32 s87, 0'); A('s_mov_b32 s85, 1')
    A('L_stream:')
    srd(8, 34, 0x8000000); srd(12, 36, 0x8000000)
    ch_ = (512 - 4 * (c0 + c1 + c2)) // 2
    assert 2 * ch_ + 4 * (c0 + c1 + c2) == 512
    A('s_mov_b32 s25, %d' % c0); A('s_mov_b32 s24, 0')
    for r_, (c_, o_) in enumerate([(c1, 4 * c0), (c2, 4 * (c0 + c1)), (ch_, 4 * (c0 + c1 + c2))]):
        A('s_cmp_eq_u32 s6, %d' % (r_ + 1)); A('s_cselect_b32 s25, %d, s25' % c_); A('s_cselect_b32 s24, %d, s24' % o_)
    A('s_mul_i32 s27, s25, s63'); A('s_add_u32 s24, s24, s27'); A('s_lshl_b32 s24, s24, 12'); A('s_lshl_b32 s25, s25, 12')
    A('s_lshl_b32 s65, s62, 21'); A('s_add_u32 s65, s65, s24'); A('s_add_u32 s66, s65, s25')
    if tik: A('s_lshl_b32 s84, s62, 8'); A('s_add_u32 s84, s84, %d' % TIK)
    if tik == 1:
        n_ = NS * (R + 2); P0 = 12 * n_ + 2 * nc + 2 * nw
        assert nc >= NS and P0 <= 512 and (nw == 0 or nw >= NS)
        A('s_lshl_b32 s24, s6, 2'); A('s_add_u32 s24, s24, s63'); A('s_mul_i32 s65, s24, %d' % (NS if il else n_)); A('s_lshl_b32 s66, s62, 21')
        A('s_mul_i32 s80, s62, %d' % trot); A('s_movk_i32 s64, 512'); A('s_mov_b32 s83, %d' % R); A('s_mov_b32 s82, %d' % (12 * NS if il else NS)); A('s_mov_b32 s27, %d' % NS)
        for role, nx, o_ in ((3, nc, 12 * n_), (4, max(nw, NS), 12 * n_ + 2 * nc)):
            A('s_mul_i32 s24, s63, %d' % nx); A('s_add_u32 s24, s24, %d' % o_)
            A('s_cmp_eq_u32 s6, %d' % role); A('s_cselect_b32 s64, 0, s64'); A('s_cselect_b32 s65, s24, s65'); A('s_cselect_b32 s83, %d, s83' % (nx // NS - 1))
            A('s_cselect_b32 s82, %d, s82' % NS); A('s_cselect_b32 s27, %d, s27' % (nx % NS))
        A('s_add_u32 s25, s83, 1'); A('s_mul_i32 s25, s25, s82'); A('s_add_u32 s25, s25, s65'); A('s_sub_u32 s82, s82, %d' % (NS - 1))
        for s_ in range(NS):
            A('v_mov_b32 v%d, s25' % (52 + s_)); A('s_cmp_gt_u32 s27, %d' % s_); A('s_cselect_b32 s%d, 0, 512' % (74 + s_)); A('s_add_u32 s25, s25, 1')
        if stamps: A('s_mov_b32 s99, 0')
    SL = 64
    def issueK(s):
        for i in range(4): A('buffer_load_dwordx4 %s, v2, s[8:11], s%d offen offset:%d nt' % (vr(SL + 32 * s + 4 * i, 4), 68 + s, 1024 * i))
    def issueV(s):
        for i in range(4): A('buffer_load_dwordx4 %s, v2, s[12:15], s%d offen offset:%d nt' % (vr(SL + 32 * s + 16 + 4 * i, 4), 68 + s, 1024 * i))
    def tileoff(t):
        A('s_add_u32 s25, %s, s80' % t); A('s_and_b32 s25, s25, 511'); A('s_lshl_b32 s25, s25, 12'); A('s_add_u32 s25, s25, s66')
    def tickoff(s):
        if tik == 2:
            nextoff(s); A('s_mov_b64 exec, 1'); A('v_mov_b32 v%d, 0' % (52 + s))
        else:
            A('v_readfirstlane_b32 s24, v%d' % (52 + s)); A('s_mov_b64 exec, 1'); A('s_or_b32 s24, s24, s%d' % (74 + s))
            A('s_cmp_ge_u32 s24, s64'); A('s_cselect_b32 s%d, 512, 0' % (74 + s)); A('s_cselect_b32 s25, 0, 1'); A('v_mov_b32 v%d, s25' % (52 + s))
            tileoff('s24'); A('s_cmp_lt_u32 s24, 512'); A('s_cselect_b32 s%d, s25, 0x8000000' % (68 + s))
        A('buffer_atomic_add v%d, off, s[16:19], s84 sc0 sc1' % (52 + s)); A('s_mov_b64 exec, -1')
    def nextoff(s):
        if tik == 1:
            tileoff('s65'); A('s_mov_b32 s%d, s25' % (68 + s)); A('s_add_u32 s65, s65, %s' % ('s82' if s == NS - 1 else '1')); return
        A('s_cmp_lt_u32 s65, s66'); A('s_cselect_b32 s%d, s65, 0x8000000' % (68 + s)); A('s_add_u32 s65, s65, 4096')
    for s in range(NS):
        nextoff(s); issueK(s); issueV(s)
    masks(5, 17)
    A('v_mov_b32 v19, 0xf149f2ca'); A('v_mov_b32 v24, 0')
    A('s_cmp_lt_u32 s2, 64'); A('s_cbranch_scc1 L_sq')
    zero_cnt('L_noz0')
    A('s_waitcnt lgkmcnt(0)'); A('s_barrier'); A(TAGADD)
    A('L_sq:')
    A('s_lshl_b32 s67, s62, 9'); A('s_add_u32 s67, s67, %d' % QX); A('v_lshlrev_b32 v21, 5, v4')
    def ql():
        A('buffer_load_dwordx4 v[32:35], v21, s[16:19], s67 offen sc1'); A('buffer_load_dwordx4 v[36:39], v21, s[16:19], s67 offen offset:16 sc1')
    gpoll(ql, lambda: tagcheck([33, 35, 37, 39]), qsl)
    for i in range(4): A('v_mov_b32 v%d, v%d' % (9 + i, 32 + 2 * i))
    for r in range(4): A('v_mov_b32 v%d, 0' % (28 + r))
    stamp(7)
    if sprio: A('s_setprio %d' % sprio)
    if stamps: A('s_mov_b32 m0, 12'); A('v_mov_b32 v62, 0')
    def sbody(s, dyn):
        K = SL + 32 * s; Vv = K + 16
        if stamps and s == 0: A('s_memrealtime s[28:29]')
        if stamps and s == 1: A('s_waitcnt lgkmcnt(0)'); A('v_writelane_b32 v62, s28, m0'); A('s_add_u32 m0, m0, 1')
        if dyn or tik != 1: A('s_cmp_ge_u32 s%d, 0x8000000' % (68 + s)); A('s_cbranch_scc1 L_sdone')
        if stamps and tik: A('s_add_u32 s99, s99, 100')
        A('s_waitcnt vmcnt(%d)' % (9 * NS - 5 if tik == 2 else 8 * NS - 4))
        for j in range(4):
            for i in range(4): A('v_dot2_f32_bf16 v%d, v%d, v%d, %s' % (13 + i, K + 4 * i + j, 9 + j, '0' if j == 0 else 'v%d' % (13 + i)))
        (tickoff if dyn else nextoff)(s); issueK(s)
        allred16([13, 14, 15, 16])
        round_scale(13, 4, 17)
        A('v_max3_f32 v20, v13, v14, v19'); A('v_max3_f32 v20, v15, v16, v20')
        allred_rows(20, 21, 'v_max_f32')
        A('v_sub_f32 v22, v19, v20'); A('v_mul_f32 v23, %s, v20' % L2E); A('v_mul_f32 v22, %s, v22' % L2E); A('v_mov_b32 v19, v20'); A('v_exp_f32 v22, v22')
        A('v_mov_b32 v21, %s' % L2E)
        for i in range(4): A('v_fma_f32 v%d, v%d, v21, -v23' % (13 + i, 13 + i))
        for i in range(4): A('v_exp_f32 v%d, v%d' % (13 + i, 13 + i))
        for r in range(4): A('v_mul_f32 v%d, v22, v%d' % (28 + r, 28 + r))
        for i in range(4): A('v_cvt_pk_bf16_f32 v%d, v%d, v%d' % (48 + i, 13 + i, 13 + i))
        A('v_add_f32 v17, v13, v14'); A('v_add_f32 v18, v15, v16')
        for i in range(4):
            for r in range(4): A('v_and_b32 v%d, v%d, v%d' % (32 + 4 * i + r, 48 + i, 5 + r))
        A('v_add_f32 v17, v17, v18'); A('v_fma_f32 v24, v24, v22, v17')
        A('s_waitcnt vmcnt(%d)' % (9 * NS - 4 if tik == 2 else 8 * NS - 4 + dyn))
        for i in range(4): A('v_mfma_f32_16x16x32_bf16 v[28:31], %s, %s, v[28:31]' % (vr(Vv + 4 * i, 4), vr(32 + 4 * i, 4)))
        issueV(s)
    if tik == 1:
        A('L_loopa:'); A('s_cmp_eq_u32 s83, 0'); A('s_cbranch_scc1 L_loop'); A('s_sub_u32 s83, s83, 1')
        for s in range(NS): sbody(s, 0)
        A('s_branch L_loopa')
    A('L_loop:')
    for s in range(NS): sbody(s, 1 if tik else 0)
    A('s_branch L_loop')
    A('L_sdone:')
    stamp(8)
    allred_rows(24, 21)
    A('s_mul_i32 s27, s87, 2560'); A('s_add_u32 s27, s27, %d' % SP)
    A('v_lshlrev_b32 v21, 7, v3'); A('v_lshl_add_u32 v21, v1, 4, v21'); A('v_add_u32 v21, s27, v21')
    A('s_mul_i32 s24, s63, 640'); A('v_add_u32 v22, s24, v21'); A('s_add_u32 s24, s24, s27'); A('v_mov_b32 v23, s24'); A('v_mov_b32 v25, v24'); A('v_mov_b32 v24, v19')
    A('s_mov_b32 exec_lo, 0x00ff00ff'); A('s_mov_b32 exec_hi, 0x00ff00ff'); A('ds_write_b128 v22, v[28:31]')
    A('ds_write_b64 v23, v[24:25] offset:512')
    A('s_cmp_eq_u32 s85, 1'); A('s_cbranch_scc1 L_snn')
    for i in range(4): A('v_mov_b32 v%d, 0' % (32 + i))
    A('v_mov_b32 v36, 0xf149f2ca'); A('v_mov_b32 v37, 0'); A('ds_write_b128 v22, v[32:35] offset:1280'); A('ds_write_b64 v23, v[36:37] offset:1792')
    A('L_snn:')
    A('s_mov_b64 exec, 1'); A('s_lshl_b32 s24, s87, 2'); A('s_add_u32 s24, s24, %d' % (CNT + 32)); A('v_mov_b32 v22, s24'); A('v_mov_b32 v23, s85'); A('s_waitcnt lgkmcnt(0)')
    A('ds_add_rtn_u32 v23, v22, v23'); A('s_waitcnt lgkmcnt(0)'); A('s_mov_b64 exec, -1'); A('v_readfirstlane_b32 s24, v23')
    A('s_add_u32 s24, s24, s85'); A('s_cmp_lg_u32 s24, 4'); A('s_cbranch_scc1 L_sfin')
    A('s_add_u32 s27, s27, 512'); A('v_mov_b32 v22, s27'); A('s_waitcnt vmcnt(0)')
    for w in range(SW): A('ds_read_b64 %s, v22 offset:%d' % (vr(96 + 2 * w, 2), 640 * w))
    for w in range(SW): A('ds_read_b128 %s, v21 offset:%d' % (vr(64 + 4 * w, 4), 640 * w))
    A('s_and_b32 s24, s62, 31'); A('s_lshl_b32 s24, s24, 14'); A('s_add_u32 s24, s24, %d' % PT); A('s_lshr_b32 s25, s62, 5'); A('s_lshl_b32 s25, s25, 2'); A('s_add_u32 s25, s25, s6')
    A('s_lshr_b32 s27, s62, 5'); A('s_add_u32 s27, s27, 8'); A('s_cmp_eq_u32 s6, 4'); A('s_cselect_b32 s25, s27, s25'); A('s_cselect_b32 s30, 256, 0')
    A('s_lshl_b32 s27, s25, 4'); A('s_add_u32 s27, s27, s24'); A('s_lshl_b32 s25, s25, 8'); A('s_add_u32 s24, s24, s25'); A('s_add_u32 s24, s24, s30')
    A('v_lshlrev_b32 v44, 12, v3'); A('v_lshl_add_u32 v44, v4, 5, v44'); A('v_lshlrev_b32 v45, 12, v0')
    for i in (33, 35, 37, 39, 41, 43): A('v_mov_b32 v%d, s7' % i)
    A('s_waitcnt lgkmcnt(%d)' % SW)
    A('v_mov_b32 v40, v96')
    for w in range(1, SW): A('v_max_f32 v40, v40, v%d' % (96 + 2 * w))
    for w in range(SW): A('v_sub_f32 v%d, v%d, v40' % (96 + 2 * w, 96 + 2 * w))
    for w in range(SW): A('v_mul_f32 v%d, %s, v%d' % (96 + 2 * w, L2E, 96 + 2 * w))
    for w in range(SW): A('v_exp_f32 v%d, v%d' % (96 + 2 * w, 96 + 2 * w))
    A('v_mul_f32 v42, v96, v97')
    for w in range(1, SW): A('v_fma_f32 v42, v%d, v%d, v42' % (96 + 2 * w, 97 + 2 * w))
    A('s_waitcnt lgkmcnt(0)')
    for r in range(4): A('v_mul_f32 v%d, v96, v%d' % (32 + 2 * r, 64 + r))
    for w in range(1, SW):
        for r in range(4): A('v_fma_f32 v%d, v%d, v%d, v%d' % (32 + 2 * r, 96 + 2 * w, 64 + 4 * w + r, 32 + 2 * r))
    A('s_mov_b32 exec_lo, 0x00ff00ff'); A('s_mov_b32 exec_hi, 0x00ff00ff')
    A('buffer_store_dwordx4 v[32:35], v44, s[16:19], s24 offen sc1'); A('buffer_store_dwordx4 v[36:39], v44, s[16:19], s24 offen offset:16 sc1')
    A('s_mov_b64 exec, 15'); A('buffer_store_dwordx4 v[40:43], v45, s[16:19], s27 offen offset:2048 sc1'); A('s_mov_b64 exec, -1')
    A('L_sfin:'); A('s_cmp_eq_u32 s6, 4'); A('s_cbranch_scc1 L_setb2')
    A('s_branch L_fin')
    A('L_sexit:'); A('s_barrier'); A('s_branch L_fin')

    A('L_bwg:')
    srd(20, 32, 2048)
    A('s_and_b32 s5, s2, 31'); A('s_lshl_b32 s65, s5, 8')
    A('v_lshrrev_b32 v7, 3, v4'); A('v_lshlrev_b32 v28, 10, v7'); A('v_lshlrev_b32 v7, 8, v7'); A('v_lshl_add_u32 v7, v3, 6, v7')
    A('s_lshl_b32 s86, s5, 17'); A('s_lshl_b32 s24, s63, 8'); A('s_add_u32 s86, s86, s24')
    A('s_cmp_ge_u32 s2, 32'); A('s_cbranch_scc1 L_wwg')
    srd(8, 38, 0x400000)
    A('s_lshl_b32 s64, s3, 19'); A('s_add_u32 s64, s64, s65'); A('s_lshl_b32 s27, s3, 7')
    A('v_lshlrev_b32 v5, 17, v3'); A('v_lshl_add_u32 v5, v4, 4, v5'); A('v_lshl_add_u32 v28, v3, 5, v28')
    A('s_and_b32 s80, s2, 1'); A('s_lshl_b32 s79, s80, 16'); A('s_lshl_b32 s80, s80, 4')
    if tik:
        A('s_cmp_lg_u32 s3, 0'); A('s_cbranch_scc1 L_noti')
        A('s_add_u32 s24, s65, %d' % TIK); A('v_lshlrev_b32 v29, 13, v0'); A('v_mov_b32 v30, %d' % P0); A('s_mov_b64 exec, 3')
        A('buffer_store_dword v30, v29, s[16:19], s24 offen sc0 sc1'); A('s_mov_b64 exec, -1'); A('L_noti:')
    xload(16); wl(8, 16)
    zero_cnt('L_noz1')
    selinit()
    gemv(16, after=0)
    stamp(1)
    d_to_lds_f32(QP, 's3')
    A('s_waitcnt lgkmcnt(0)'); A('s_barrier'); A(TAGADD)
    A('s_cmp_lg_u32 s3, 0'); A('s_cbranch_scc1 L_cq')
    A('v_add_u32 v30, %d, v2' % QP)
    for w in range(8): A('ds_read_b128 %s, v30 offset:%d' % (vr(32 + 4 * w, 4), 1024 * w))
    A('v_lshrrev_b32 v30, 5, v0'); A('v_lshlrev_b32 v30, 14, v30'); A('v_and_b32 v31, 31, v0'); A('v_lshl_add_u32 v30, v31, 4, v30')
    A('s_lshl_b32 s24, s5, 9'); A('s_add_u32 s24, s24, %d' % QX)
    A('s_waitcnt lgkmcnt(0)')
    for n in (16, 8, 4):
        for i in range(n): A('v_add_f32 v%d, v%d, v%d' % (32 + i, 32 + i, 32 + n + i))
    A('v_cvt_pk_bf16_f32 v32, v32, v33'); A('v_cvt_pk_bf16_f32 v34, v34, v35'); A('v_mov_b32 v33, s7'); A('v_mov_b32 v35, s7')
    A('buffer_store_dwordx4 v[32:35], v30, s[16:19], s24 offen sc1')
    A('L_cq:'); A('s_barrier')
    stamp(2)
    A('s_lshr_b32 s87, s63, 1'); A('s_lshl_b32 s62, s87, 5'); A('s_add_u32 s62, s62, s5'); A('s_mov_b32 s6, 3'); A('s_mov_b32 s85, 2')
    A('s_cmp_lt_u32 s3, 4'); A('s_cbranch_scc1 L_b2in'); A('s_and_b32 s63, s63, 1'); A('s_branch L_stream')
    A('L_b2in:')
    if nob == 1: A('s_branch L_fin')
    A('s_setprio %d' % cprio)
    srd(8, 44, 0x1000000)
    A('s_lshr_b32 s4, s2, 5'); A('s_mov_b32 s67, s2')
    A('s_lshl_b32 s76, s2, 18'); A('s_lshl_b32 s24, s63, 14'); A('s_add_u32 s76, s76, s24')
    A('s_mov_b32 s77, %d' % CBUF); A('s_mul_i32 s78, s63, %d' % (16 * PITCH))
    def dma():
        A('s_mov_b32 m0, s78'); A('s_mov_b32 s24, s76')
        for r in range(16):
            A('buffer_load_dwordx4 v2, s[8:11], s24 offen offset:%d nt lds' % ((r & 3) * 1024))
            if r < 15:
                A('s_add_u32 m0, m0, %d' % (PITCH - 1024 if (r & 3) != 3 else PITCH + 3072))
                if (r & 3) == 3: A('s_add_u32 s24, s24, 4096')
        A('s_add_u32 s76, s76, 65536')
    dma()
    if not dord: A('s_add_u32 s78, s78, %d' % CBUF); dma(); A('s_sub_u32 s78, s78, %d' % CBUF)
    A('s_and_b32 s68, s63, 1'); A('s_lshr_b32 s69, s63, 1'); A('s_lshl_b32 s70, s68, 4')
    A('s_lshl_b32 s71, s68, 8'); A('s_add_u32 s71, s71, %d' % QAF); A('v_lshlrev_b32 v30, 4, v4')
    for i in range(64): A('v_mov_b32 v%d, 0' % (64 + i))
    A('v_mov_b32 v34, 0xf149f2ca'); A('v_mov_b32 v38, 0')
    gpoll(lambda: A('buffer_load_dwordx4 v[40:43], v30, s[16:19], s71 offen sc1'), lambda: tagcheck([40, 41, 42, 43]), 8)
    A('v_lshlrev_b32 v30, 10, v4'); A('v_lshl_add_u32 v30, v3, 4, v30'); A('s_lshl_b32 s24, s4, 5'); A('s_add_u32 s24, s24, s70'); A('s_lshl_b32 s24, s24, 10'); A('s_add_u32 s24, s24, %d' % QA)
    for ks in range(16): A('buffer_load_dwordx4 %s, v30, s[16:19], s24 offen offset:%d sc1' % (vr(128 + 4 * ks, 4), 64 * ks))
    if dord: A('s_add_u32 s78, s78, %d' % CBUF); dma(); A('s_sub_u32 s78, s78, %d' % CBUF)
    A('v_mul_u32_u24 v32, %d, v4' % PITCH); A('v_lshl_add_u32 v32, v3, 4, v32')
    A('v_lshrrev_b32 v39, 2, v4'); A('v_lshl_add_u32 v39, v3, 2, v39'); A('v_mul_u32_u24 v39, %d, v39' % PITCH); A('v_and_b32 v33, 3, v4'); A('v_lshl_add_u32 v39, v33, 4, v39')
    A('s_lshl_b32 s24, s69, 9'); A('v_add_u32 v39, s24, v39')
    A('s_mov_b32 s74, 4'); A('s_mov_b32 s75, 0'); A('s_waitcnt vmcnt(%d)' % (16 if dord else 0))
    stamp(3)
    A('L_b2:')
    A('s_waitcnt vmcnt(16)'); A('s_cmp_lg_u32 s74, 1'); A('s_cbranch_scc1 L_b2w'); A('s_waitcnt vmcnt(0)'); A('L_b2w:')
    A('s_add_u32 s75, s75, 4'); hbar(CNT, 's75')
    groups = [(T, kq) for T in range(4) for kq in range(4)]
    def rdS(gi):
        T, kq = groups[gi]
        for i in range(4): A('ds_read_b128 %s, v32 offset:%d' % (vr(192 + 16 * (gi % 3) + 4 * i, 4), T * 16 * PITCH + 64 * (4 * kq + i)))
    rdS(0); rdS(1)
    for gi, (T, kq) in enumerate(groups):
        if gi + 2 < len(groups): rdS(gi + 2)
        A('s_waitcnt lgkmcnt(%d)' % (4 * min(2, len(groups) - 1 - gi)))
        for i in range(4):
            ks = 4 * kq + i
            A('v_mfma_f32_16x16x32_bf16 %s, %s, %s, %s' % (vr(48 + 4 * T, 4), vr(192 + 16 * (gi % 3) + 4 * i, 4), vr(128 + 4 * ks, 4), '0' if ks == 0 else vr(48 + 4 * T, 4)))
    g2 = [(P, up) for P in range(8) for up in range(2)]
    def rdP(gi):
        P, up = g2[gi]
        for i in range(4): A('ds_read_b64_tr_b16 %s, v39 offset:%d' % (vr(192 + 8 * (gi % 3) + 2 * i, 2), i * 16 * PITCH + 64 * P + 8 * up))
    rdP(0); rdP(1)
    round_scale(48, 16, 40)
    A('v_max3_f32 v35, v48, v49, v34')
    for i in range(50, 64, 2): A('v_max3_f32 v35, v35, v%d, v%d' % (i, i + 1))
    allred_rows(35, 36, 'v_max_f32')
    A('v_sub_f32 v37, v34, v35'); A('v_mul_f32 v37, %s, v37' % L2E); A('v_exp_f32 v37, v37'); A('v_mov_b32 v34, v35')
    A('v_mul_f32 v35, %s, v35' % L2E); A('v_mov_b32 v36, %s' % L2E)
    for i in range(16): A('v_fma_f32 v%d, v%d, v36, -v35' % (48 + i, 48 + i))
    for i in range(16): A('v_exp_f32 v%d, v%d' % (48 + i, 48 + i))
    for i in range(64): A('v_mul_f32 v%d, v37, v%d' % (64 + i, 64 + i))
    for i in range(8): A('v_cvt_pk_bf16_f32 v%d, v%d, v%d' % (40 + i, 48 + 2 * i, 49 + 2 * i))
    for n in (8, 4, 2, 1):
        for i in range(n): A('v_add_f32 v%d, v%d, v%d' % (48 + i, 48 + i, 48 + n + i))
    A('v_fma_f32 v38, v38, v37, v48')
    for gi, (P, up) in enumerate(g2):
        if gi + 2 < len(g2): rdP(gi + 2)
        A('s_waitcnt lgkmcnt(%d)' % (4 * min(2, len(g2) - 1 - gi)))
        acc = 64 + 8 * P + 4 * up
        for u in range(2): A('v_mfma_f32_16x16x32_bf16 %s, %s, %s, %s' % (vr(acc, 4), vr(192 + 8 * (gi % 3) + 4 * u, 4), vr(40 + 4 * u, 4), vr(acc, 4)))
    A('s_sub_u32 s74, s74, 1'); A('s_cmp_eq_u32 s74, 0'); A('s_cbranch_scc1 L_b2e')
    A('v_add_u32 v32, s77, v32'); A('v_add_u32 v39, s77, v39')
    A('s_cmp_eq_u32 s74, 1'); A('s_cbranch_scc1 L_b2')
    A('s_add_u32 s75, s75, 4'); hbar(CNT, 's75')
    dma()
    A('s_add_u32 s78, s78, s77'); A('s_sub_u32 s77, 0, s77')
    A('s_branch L_b2')
    A('L_b2e:')
    allred_rows(38, 36)
    A('v_lshlrev_b32 v36, 16, v4'); A('v_lshl_add_u32 v36, v3, 4, v36')
    A('s_lshl_b32 s72, s70, 16'); A('s_lshl_b32 s24, s69, 15'); A('s_add_u32 s72, s72, s24'); A('s_lshl_b32 s24, s67, 8'); A('s_add_u32 s72, s72, s24'); A('s_add_u32 s72, s72, %d' % CLP); A('s_add_u32 s73, s72, 16384')
    for P in range(8):
        for i in range(4): A('v_cvt_pk_bf16_f32 v%d, v%d, v%d' % (192 + 4 * P + i, 64 + 8 * P + 2 * i, 65 + 8 * P + 2 * i))
        A('buffer_store_dwordx4 %s, v36, s[16:19], s%d offen offset:%d sc1' % (vr(192 + 4 * P, 4), 72 + (P >> 2), 64 * (P & 3)))
    A('v_mov_b32 v40, v34'); A('v_mov_b32 v41, s7'); A('v_mov_b32 v42, v38'); A('v_mov_b32 v43, s7'); A('v_lshlrev_b32 v36, 11, v4')
    A('s_lshl_b32 s24, s70, 11'); A('s_lshl_b32 s25, s69, 10'); A('s_add_u32 s24, s24, s25'); A('s_lshl_b32 s25, s67, 4'); A('s_add_u32 s24, s24, s25'); A('s_add_u32 s24, s24, %d' % CLF)
    A('s_mov_b64 exec, 0xffff'); A('s_waitcnt vmcnt(0)')
    A('buffer_store_dwordx4 v[40:43], v36, s[16:19], s24 offen sc1'); A('s_mov_b64 exec, -1')
    stamp(4)
    A('s_branch L_tail')

    A('L_wwg:')
    A('s_lshl_b32 s64, s63, 20'); A('s_add_u32 s64, s64, s65'); A('s_lshl_b32 s27, s63, 8')
    A('v_lshlrev_b32 v5, 18, v3'); A('v_lshl_add_u32 v5, v4, 4, v5'); A('v_lshl_add_u32 v28, v3, 6, v28')
    def wregs():
        A('v_lshlrev_b32 v6, 15, v3'); A('v_lshl_add_u32 v6, v4, 4, v6')
        A('v_lshrrev_b32 v47, 3, v4'); A('v_lshlrev_b32 v7, 8, v47'); A('v_lshl_add_u32 v7, v3, 6, v7')
        A('v_lshlrev_b32 v47, 7, v47'); A('v_lshl_add_u32 v47, v1, 4, v47'); A('v_lshl_add_u32 v47, v3, 14, v47')
        A('s_lshl_b32 s77, s63, 16'); A('s_add_u32 s77, s77, s65'); A('s_add_u32 s77, s77, %d' % YY)
    wregs()
    A('s_and_b32 s80, s2, 3'); A('s_lshl_b32 s79, s80, 16'); A('s_lshl_b32 s80, s80, 4')
    A('s_cmp_ge_u32 s3, 4'); A('s_cbranch_scc1 L_setb')
    srd(8, 46, 0x400000)
    A('s_setprio 3')
    xload(); wl(8)
    zero_cnt('L_noz2')
    selinit()
    gemv(32, after=0)
    stamp(1)
    d_to_lds_f32(QP, 's63')
    A('s_waitcnt lgkmcnt(0)'); A('s_barrier'); A(TAGADD)
    A('s_setprio 0')
    if wqa: A('v_mov_b32 v29, %d' % (CNT + 24)); ldspoll(29, 4, 4)
    A('s_branch L_b2in')
    A('L_tail:')
    wregs()
    A('s_cmp_lt_u32 s2, 32'); A('s_cselect_b32 s12, s40, s52'); A('s_cselect_b32 s13, s41, s53'); A('s_mov_b32 s14, 0x400000'); A('s_mov_b32 s15, 0x20000')
    A('s_mov_b32 s24, s86'); wload1k(12)
    selinit()
    A('s_cmp_lt_u32 s2, 32'); A('s_cbranch_scc1 L_ctail')
    A('v_mov_b32 v29, %d' % (CNT + 12)); ldspoll(29, 4, 2)
    A('v_lshlrev_b32 v30, 1, v7'); A('v_add_u32 v30, %d, v30' % CTXP)
    for w in range(4):
        for k in range(8): A('ds_read_b128 %s, v30 offset:%d' % (vr((48, 80, 80, 80)[w] + 4 * k, 4), 1024 * w + 16 * k))
        if w >= 1:
            A('s_waitcnt lgkmcnt(0)')
            for i in range(32): A('v_add_f32 v%d, v%d, v%d' % (48 + i, 48 + i, 80 + i))
    for i in range(16): A('v_cvt_pk_bf16_f32 v%d, v%d, v%d' % (XR + i, 48 + 2 * i, 49 + 2 * i))
    stamp(5)
    A('s_branch L_gpub')
    A('L_ctail:')
    A('s_add_u32 s77, s77, %d' % YPH)
    A('s_lshl_b32 s71, s5, 14'); A('s_lshl_b32 s24, s63, 12'); A('s_add_u32 s71, s71, s24'); A('s_add_u32 s71, s71, %d' % PT)
    A('v_lshlrev_b32 v46, 4, v3')
    A('v_and_b32 v44, 1, v4'); A('v_lshlrev_b32 v44, 5, v44'); A('v_and_b32 v43, 14, v4'); A('v_add_u32 v44, v44, v43'); A('s_lshl_b32 s24, s63, 6'); A('s_add_u32 s24, s24, %d' % XA); A('v_add_u32 v44, s24, v44')
    if nw:
        A('v_lshlrev_b32 v45, 4, v4')
        def p5l():
            for b in range(2):
                A('buffer_load_dwordx4 %s, v45, s[16:19], s71 offen offset:%d sc1' % (vr(64 + 8 * b, 4), 2304 + 256 * b)); A('buffer_load_dwordx4 %s, off, s[16:19], s71 offset:%d sc1' % (vr(68 + 8 * b, 4), 2176 + 16 * b))
        gpoll(p5l, lambda: tagcheck(list(range(65, 80, 2))), 16)
    def ptl():
        for b in range(2):
            A('buffer_load_dwordx4 %s, v2, s[16:19], s71 offen offset:%d sc1' % (vr(48 + 8 * b, 4), 1024 * b)); A('buffer_load_dwordx4 %s, v46, s[16:19], s71 offen offset:%d sc1' % (vr(52 + 8 * b, 4), 2048 + 64 * b))
    def ptbody():
        for b in range(2):
            d0 = 48 + 8 * b; d1 = d0 + 2; m = d0 + 4; l = d0 + 6; M = d0 + 1; t = d0 + 3
            A('v_mov_b32 v%d, v%d' % (M, m)); allred_rows(M, t, 'v_max_f32')
            if nw:
                e5 = 80 + b
                A('v_max_f32 v%d, v%d, v%d' % (M, M, 68 + 8 * b)); A('v_sub_f32 v%d, v%d, v%d' % (e5, 68 + 8 * b, M)); A('v_mul_f32 v%d, %s, v%d' % (e5, L2E, e5)); A('v_exp_f32 v%d, v%d' % (e5, e5))
            A('v_sub_f32 v%d, v%d, v%d' % (m, m, M)); A('v_mul_f32 v%d, %s, v%d' % (m, L2E, m)); A('v_exp_f32 v%d, v%d' % (m, m))
            for x in (l, d0, d1): A('v_mul_f32 v%d, v%d, v%d' % (x, m, x))
            for x in (l, d0, d1): allred_rows(x, t)
            if nw:
                for x, y in ((l, 70), (d0, 64), (d1, 66)): A('v_fma_f32 v%d, v%d, v%d, v%d' % (x, e5, y + 8 * b, x))
            A('v_rcp_f32 v%d, v%d' % (l, l)); A('v_mul_f32 v%d, v%d, v%d' % (d0, l, d0)); A('v_mul_f32 v%d, v%d, v%d' % (d1, l, d1))
            A('v_cvt_pk_bf16_f32 v%d, v%d, v%d' % (d0, d0, d1))
            A('ds_write_b16 v44, v%d offset:%d' % (d0, 256 * b)); A('ds_write_b16_d16_hi v44, v%d offset:%d' % (d0, 256 * b + 16))
    gpoll(ptl, lambda: tagcheck(list(range(49, 64, 2))), ptsl, body=ptbody)
    stamp(5)
    hbar(CNT + 16, 4)
    A('v_add_u32 v30, %d, v7' % XA)
    for k in range(4): A('ds_read_b128 %s, v30 offset:%d' % (vr(XR + 4 * k, 4), 16 * k))
    A('s_waitcnt lgkmcnt(0)')
    A('L_gpub:')
    gemv(32, after=0)
    for r in range(4): A('v_mov_b32 v%d, s7' % (33 + 2 * r))
    for r in range(4): A('v_mov_b32 v%d, v%d' % (32 + 2 * r, DD + r))
    A('s_add_u32 s78, s77, 8192')
    A('buffer_store_dwordx4 v[32:35], v47, s[16:19], s77 offen sc1'); A('buffer_store_dwordx4 v[36:39], v47, s[16:19], s78 offen sc1')
    A('s_cmp_lg_u32 s3, 0'); A('s_cbranch_scc1 L_fin6')
    ldsinc(CNT + 20)
    A('L_fin6:')
    stamp(6)
    A('s_branch L_fin')
    A('L_setb:')
    srd(8, 48, 0x400000)
    A('s_setprio %d' % min(bprio, 2))
    wl(8, r=False)
    selinit()
    A('s_waitcnt lgkmcnt(0)'); A('s_barrier'); A(TAGADD)
    A('v_lshlrev_b32 v30, 5, v4'); A('v_add_u32 v30, %d, v30' % QP)
    for b in range(2):
        for w in range(4):
            for k in range(2): A('ds_read_b128 %s, v30 offset:%d' % (vr(48 + 32 * b + 8 * w + 4 * k, 4), 1024 * w + 512 * b + 16 * k))
    A('s_waitcnt lgkmcnt(0)')
    for b in range(2):
        t0 = 48 + 32 * b
        for i in range(8):
            A('v_add_f32 v%d, v%d, v%d' % (t0 + i, t0 + i, t0 + 8 + i)); A('v_add_f32 v%d, v%d, v%d' % (t0 + 16 + i, t0 + 16 + i, t0 + 24 + i))
        for i in range(8): A('v_add_f32 v%d, v%d, v%d' % (t0 + i, t0 + i, t0 + 16 + i))
        for i in range(4): A('v_cvt_pk_bf16_f32 v%d, v%d, v%d' % (32 + 4 * b + i, t0 + 2 * i, t0 + 2 * i + 1))
    stamp(1)
    A('s_lshl_b32 s24, s5, 10'); A('s_add_u32 s24, s24, s27'); A('s_add_u32 s72, s24, %d' % QA); A('s_add_u32 s73, s72, 32768'); A('v_lshlrev_b32 v31, 6, v3')
    for t8 in range(4):
        if t8 == 0: A('s_waitcnt vmcnt(0)')
        for b in range(2):
            for j in range(4):
                for t in range(8): A('v_dot2_f32_bf16 v%d, v%d, v%d, %s' % (48 + 8 * b + t, WB + 4 * (8 * t8 + t) + j, 32 + 4 * b + j, '0' if j == 0 else 'v%d' % (48 + 8 * b + t)))
        allred16(list(range(48, 64)))
        for i in range(8): A('v_cvt_pk_bf16_f32 v%d, v%d, v%d' % (64 + 8 * t8 + i, 48 + 2 * i, 49 + 2 * i))
        A('s_mov_b32 exec_lo, 0x00010001'); A('s_mov_b32 exec_hi, 0x00010001')
        for b in range(2): A('buffer_store_dwordx4 %s, v31, s[16:19], s%d offen offset:%d sc1' % (vr(64 + 8 * t8 + 4 * b, 4), 72 + b, 16 * t8))
        A('s_mov_b64 exec, -1')
    A('s_lshl_b32 s24, s5, 4'); A('s_lshl_b32 s25, s63, 2'); A('s_add_u32 s24, s24, s25'); A('s_add_u32 s24, s24, %d' % QAF)
    A('v_mov_b32 v28, s7'); A('s_mov_b64 exec, 1'); A('s_waitcnt vmcnt(0)')
    A('buffer_store_dword v28, off, s[16:19], s24 sc1'); A('s_mov_b64 exec, -1')
    ldsinc(CNT + 24)
    stamp(2)
    if nob == 1: A('s_branch L_fin')
    A('s_setprio %d' % bprio)
    if uvg: A('v_mov_b32 v29, %d' % CNT); ldspoll(29, uvg, 16)
    elif uvsl: A('s_sleep %d' % uvsl)
    if nw:
        A('s_setprio 0')
        A('s_lshr_b32 s87, s63, 1'); A('s_lshl_b32 s62, s87, 5'); A('s_add_u32 s62, s62, s5'); A('s_mov_b32 s6, 4'); A('s_mov_b32 s85, 2'); A('s_and_b32 s63, s63, 1'); A('s_branch L_stream')
    A('L_setb2:')
    if nw:
        A('s_setprio %d' % bprio); A('s_waitcnt vmcnt(0)')
        A('s_and_b32 s63, s3, 3'); A('s_lshl_b32 s65, s5, 8'); A('s_lshl_b32 s64, s63, 20'); A('s_add_u32 s64, s64, s65')
        A('v_lshlrev_b32 v5, 18, v3'); A('v_lshl_add_u32 v5, v4, 4, v5')
        wregs()
    srd(8, 50, 0x400000)
    wl(8, r=False)
    if nw: selinit()
    A('s_lshl_b32 s71, s5, 11'); A('s_lshr_b32 s24, s63, 1'); A('s_lshl_b32 s24, s24, 10'); A('s_add_u32 s71, s71, s24'); A('s_add_u32 s71, s71, %d' % CLF)
    gpoll(lambda: A('buffer_load_dwordx4 v[32:35], v2, s[16:19], s71 offen sc1'), lambda: tagcheck([33, 35]), 16)
    stamp(3)
    A('v_lshlrev_b32 v30, 12, v3'); A('v_lshl_add_u32 v30, v4, 4, v30')
    A('s_lshl_b32 s24, s5, 2'); A('s_add_u32 s24, s24, s63'); A('s_lshl_b32 s24, s24, 14'); A('s_add_u32 s24, s24, %d' % CLP)
    for t in range(16): A('buffer_load_dwordx4 %s, v30, s[16:19], s24 offen offset:%d sc1' % (vr(48 + 4 * t, 4), 256 * t))
    A('v_mov_b32 v36, v32'); allred16([36], 'v_max_f32'); allred_rows(36, 37, 'v_max_f32', (16,))
    A('v_sub_f32 v32, v32, v36'); A('v_mul_f32 v32, %s, v32' % L2E); A('v_exp_f32 v32, v32'); A('v_mul_f32 v36, v32, v34')
    allred16([36]); allred_rows(36, 37, 'v_add_f32', (16,))
    A('v_rcp_f32 v36, v36'); A('v_mul_f32 v32, v32, v36'); A('v_cvt_pk_bf16_f32 v32, v32, v32')
    A('s_lshl_b32 s24, s3, 9'); A('s_add_u32 s74, s24, %d' % XB)
    A('v_lshlrev_b32 v30, 1, v0'); A('v_add_u32 v30, s74, v30'); A('ds_write_b16 v30, v32'); A('v_lshlrev_b32 v30, 5, v3'); A('v_add_u32 v30, s74, v30'); A('s_waitcnt lgkmcnt(0)')
    for k in range(2): A('ds_read_b128 %s, v30 offset:%d' % (vr(XR + 4 * k, 4), 16 * k))
    A('v_lshrrev_b32 v30, 3, v4'); A('v_lshrrev_b32 v31, 1, v3'); A('v_cmp_eq_u32 vcc, v30, v31')
    A('s_waitcnt lgkmcnt(0)')
    for i in range(8): A('v_cndmask_b32 v%d, 0, v%d, vcc' % (XR + i, XR + i))
    gemv(16, base=48, after=0)
    A('v_cvt_pk_bf16_f32 v28, v%d, v%d' % (DD, DD + 1)); A('v_cvt_pk_bf16_f32 v29, v%d, v%d' % (DD + 2, DD + 3))
    A('v_add_u32 v30, s74, v7'); A('v_lshl_add_u32 v31, v1, 1, v30')
    A('ds_write_b16 v31, v28'); A('ds_write_b16_d16_hi v31, v28 offset:16'); A('ds_write_b16 v31, v29 offset:32'); A('ds_write_b16_d16_hi v31, v29 offset:48')
    A('s_waitcnt lgkmcnt(0)')
    for k in range(4): A('ds_read_b128 %s, v30 offset:%d' % (vr(XR + 4 * k, 4), 16 * k))
    A('s_waitcnt lgkmcnt(0)')
    gemv(32)
    d_to_lds_f32(CTXP, 's63')
    ldsinc(CNT + 12)
    stamp(4)
    A('s_cmp_lg_u32 s3, 4'); A('s_cbranch_scc1 L_fin')
    A('L_final:')
    srd(8, 54, 1024)
    A('buffer_load_dwordx4 v[32:35], v2, s[20:23], 0 offen'); A('buffer_load_dwordx4 v[36:39], v2, s[20:23], 0 offen offset:1024'); A('buffer_load_dwordx4 v[40:43], v2, s[8:11], 0 offen')
    A('s_lshl_b32 s77, s5, 13'); A('s_add_u32 s77, s77, %d' % YY); A('s_add_u32 s78, s77, 4096'); A('s_mov_b32 s75, 0'); A('v_mov_b32 v44, %d' % (CNT + 20))
    A('s_waitcnt vmcnt(0)')
    for i in range(4): A('v_lshlrev_b32 v%d, 16, v%d' % (64 + 2 * i, 40 + i)); A('v_and_b32 v%d, 0xffff0000, v%d' % (65 + 2 * i, 40 + i))
    for b in range(2):
        s0 = 48 + 8 * b
        for i in range(4): A('v_lshlrev_b32 v%d, 16, v%d' % (s0 + 2 * i, 32 + 4 * b + i)); A('v_and_b32 v%d, 0xffff0000, v%d' % (s0 + 1 + 2 * i, 32 + 4 * b + i))
        for i in range(8): A('v_mul_f32 v%d, v%d, v%d' % (s0 + i, s0 + i, 64 + i))
        for i in range(4): A('v_cvt_pk_bf16_f32 v%d, v%d, v%d' % (72 + i, s0 + 2 * i, s0 + 1 + 2 * i))
        for i in range(4): A('v_lshlrev_b32 v%d, 16, v%d' % (s0 + 2 * i, 72 + i)); A('v_and_b32 v%d, 0xffff0000, v%d' % (s0 + 1 + 2 * i, 72 + i))
        for n in (4, 2, 1):
            for i in range(n): A('v_add_f32 v%d, v%d, v%d' % (s0 + i, s0 + i, s0 + n + i))
        allred16([s0]); allred_rows(s0, s0 + 1)
    A('v_and_b32 v28, 8, v0'); A('v_cmp_eq_u32 vcc, 0, v28'); A('v_cndmask_b32 v48, v56, v48, vcc')
    A('v_cvt_pk_bf16_f32 v48, v48, v48'); A('v_lshlrev_b32 v48, 16, v48'); A('v_mul_f32 v48, 0xbfb8aa3b, v48'); A('v_exp_f32 v48, v48'); A('v_add_f32 v48, 1.0, v48'); A('v_rcp_f32 v48, v48')
    A('v_cvt_pk_bf16_f32 v48, v48, v48'); A('v_lshlrev_b32 v40, 16, v48'); A('v_sub_f32 v41, 1.0, v40'); A('v_cvt_pk_bf16_f32 v41, v41, v41'); A('v_lshlrev_b32 v41, 16, v41')
    A('L_fph:')
    ldspoll(44, 1, 4)
    def yl():
        for k in range(8): A('buffer_load_dwordx4 %s, v2, s[16:19], s%d offen offset:%d sc1' % (vr(48 + 4 * k, 4), 77 + (k >> 2), 1024 * (k & 3)))
    gpoll(yl, lambda: tagcheck(list(range(49, 80, 2))), ysl)
    for n in (16, 8, 4):
        for i in range(0, n, 2): A('v_add_f32 v%d, v%d, v%d' % (48 + i, 48 + i, 48 + n + i))
    allred_rows(48, 36); allred_rows(50, 36)
    A('v_cvt_pk_bf16_f32 v32, v48, v50'); A('v_and_b32 v33, 0xffff0000, v32'); A('v_lshlrev_b32 v32, 16, v32')
    A('v_mul_f32 v32, v41, v32'); A('v_mul_f32 v33, v41, v33'); A('v_cvt_pk_bf16_f32 v32, v32, v33'); A('v_and_b32 v33, 0xffff0000, v32'); A('v_lshlrev_b32 v32, 16, v32')
    A('s_cmp_lg_u32 s75, 0'); A('s_cbranch_scc1 L_fout')
    stamp(5)
    A('v_mov_b32 v42, v32'); A('v_mov_b32 v43, v33'); A('v_mov_b32 v41, v40'); A('v_mov_b32 v44, %d' % (CNT + 20)); A('s_mov_b32 s75, 1'); A('s_add_u32 s77, s77, %d' % YPH); A('s_add_u32 s78, s78, %d' % YPH); A('s_branch L_fph')
    A('L_fout:')
    A('v_add_f32 v32, v32, v42'); A('v_add_f32 v33, v33, v43'); A('v_cvt_pk_bf16_f32 v32, v32, v33')
    srd(8, 56, 2048)
    A('s_lshl_b32 s24, s5, 5'); A('v_lshrrev_b32 v33, 3, v4'); A('v_lshlrev_b32 v33, 10, v33'); A('v_lshl_add_u32 v33, v1, 1, v33')
    A('s_mov_b64 exec, 0xffff'); A('buffer_store_short v32, v33, s[8:11], s24 offen'); A('buffer_store_short_d16_hi v32, v33, s[8:11], s24 offen offset:16')
    A('s_cmp_lg_u32 s5, 0'); A('s_cbranch_scc1 L_fe')
    A('s_mov_b64 exec, 1'); A('s_sub_u32 s24, s7, 0x9e3779b0'); A('v_mov_b32 v1, s24'); A('buffer_store_dword v1, off, s[16:19], s81 sc0 sc1')
    A('L_fe:'); A('s_mov_b64 exec, -1')
    stamp(6)
    A('L_fin:')
    if stamps:
        A('s_memrealtime s[28:29]'); A('s_getreg_b32 s24, hwreg(HW_REG_XCC_ID)'); A('s_mov_b64 exec, -1'); A('s_waitcnt lgkmcnt(0)')
        A('v_mov_b32 v4, s88'); A('v_mov_b32 v5, s89'); A('v_mov_b32 v6, s28'); A('v_mov_b32 v7, s24'); A('v_mov_b32 v8, 0'); A('v_mov_b32 v9, v62')
        for k in range(1, 10): A('v_writelane_b32 v9, s%d, %d' % (90 + k, k))
        A('v_writelane_b32 v9, s28, 10')
        A('s_lshl_b32 s25, s2, 3'); A('s_add_u32 s25, s25, s3'); A('s_lshl_b32 s25, s25, 4'); A('s_lshl_b32 s24, s25, 4'); A('s_add_u32 s24, s24, 0x40000'); A('v_lshlrev_b32 v10, 2, v0')
        A('buffer_store_dword v9, v10, s[16:19], s24 offen'); A('s_mov_b64 exec, 1'); A('buffer_store_dwordx4 v[4:7], v8, s[16:19], s25 offen')
    A('L_end:')
    body = fix(L)
    H = ['; generated by work/gen3.py', '; @launch grid=(256,1,1) block=(512,1,1) lds=%d' % LDSSZ,
         '.amdgcn_target "amdgcn-amd-amdhsa--gfx950"', '.text', '.globl %s_kernel' % KN, '.p2align 8', '.type %s_kernel,@function' % KN, '%s_kernel:' % KN]
    T = ['s_endpgm', '.section .rodata,"a"', '.p2align 6', '.amdhsa_kernel %s_kernel' % KN, '  .amdhsa_next_free_vgpr 256', '  .amdhsa_next_free_sgpr 102', '  .amdhsa_accum_offset 256',
         '  .amdhsa_group_segment_fixed_size 0', '  .amdhsa_kernarg_size 120', '  .amdhsa_user_sgpr_count 2', '  .amdhsa_user_sgpr_kernarg_segment_ptr 1', '  .amdhsa_system_sgpr_workgroup_id_x 1', '.end_amdhsa_kernel']
    return '\n'.join(H + [('' if l.endswith(':') else '  ') + l for l in body] + T) + '\n'
if __name__ == '__main__':
    out = sys.argv[1]; kw = {}
    for a in sys.argv[2:]:
        k, v = a.split('='); kw[k] = int(v) if v.lstrip('-').isdigit() else v
    open(out, 'w').write(gen(**kw))
```

```python
import sys
from asmlib import fix
KN = 'gated_mix__mha_block_cached__compressed_kv_cla__decode'
WSB = 0x100000
EPO = WSB; QX = WSB + 0x1000; QAF = WSB + 0xA000; TIK = WSB + 0xB000; QA = WSB + 0x10000; CLF = WSB + 0x20000
PT = WSB + 0x40000; YY = WSB + 0xC0000; YPH = 0x40000; CLP = WSB + 0x200000
WSSZ = 0x800000
PITCH = 1056; CBUF = 64 * PITCH
QP = 135168; CTXP = QP + 4096; XB = QP + 8192; XA = XB + 4096; SP = XA + 512; CNT = SP + 5120; LDSSZ = CNT + 256
L2E = '0x3fb8aa3b'; SCALE = '0x3db504f3'
BOUND = 50000
def gen(NS=5, stamps=False, wf='nt', rot=1, c0=39, c1=39, c2=38, uvsl=127, nob=0, qsl=2, ptsl=2, sprio=0, SW=4, wqa=1, cprio=3, bprio=3, tik=1, gmap=1, ysl=1, trot=0, R=5, nc=16, il=1, dord=1, uvg=8, nw=0, gate=0, pf=0, pfs=3, pfm='', sf='nt', stg=0, stw=0, M=0):
    sf = sf.replace('_', ' ')
    L = []; A = L.append
    cnt = [0]
    def lab(p):
        cnt[0] += 1; return 'L_%s%d' % (p, cnt[0])
    def srd(d, p, size):
        A('s_mov_b32 s%d, s%d' % (d, p)); A('s_mov_b32 s%d, s%d' % (d + 1, p + 1)); A('s_mov_b32 s%d, 0x%x' % (d + 2, size)); A('s_mov_b32 s%d, 0x20000' % (d + 3))
    def vr(a, n): return 'v[%d:%d]' % (a, a + n - 1)
    def stamp(k):
        if stamps:
            A('s_memrealtime s[28:29]'); A('s_waitcnt lgkmcnt(0)'); A('s_mov_b32 s%d, s28' % (90 + k))
    def allred16(regs, op='v_add_f32'):
        for ror in (8, 4, 2, 1):
            for r in regs: A('%s_dpp v%d, v%d, v%d row_ror:%d row_mask:0xf bank_mask:0xf' % (op, r, r, r, ror))
    def allred_rows(r, t, op='v_add_f32', sws=(16, 32)):
        for sw in sws:
            A('v_mov_b32 v%d, v%d' % (t, r)); A('v_permlane%d_swap_b32 v%d, v%d' % (sw, r, t)); A('%s v%d, v%d, v%d' % (op, r, r, t))
    def round_scale(s0, n, t0):
        for ph in range(2):
            for i in range(0, n, 2): A('v_cvt_pk_bf16_f32 v%d, v%d, v%d' % (t0 + i // 2, s0 + i, s0 + i + 1))
            for i in range(0, n, 2):
                A('v_lshlrev_b32 v%d, 16, v%d' % (s0 + i, t0 + i // 2)); A('v_and_b32 v%d, 0xffff0000, v%d' % (s0 + i + 1, t0 + i // 2))
            if ph == 0:
                for i in range(n): A('v_mul_f32 v%d, s26, v%d' % (s0 + i, s0 + i))
    def masks(d, t, n=4):
        A('v_and_b32 v%d, 1, v%d' % (t, n)); A('v_lshlrev_b32 v%d, 4, v%d' % (t, t)); A('v_mov_b32 v%d, 0xffff' % (t + 1)); A('v_lshlrev_b32 v%d, v%d, v%d' % (t, t, t + 1)); A('v_lshrrev_b32 v%d, 1, v%d' % (t + 1, n))
        for r in range(4): A('v_cmp_eq_u32 vcc, %d, v%d' % (r, t + 1)); A('v_cndmask_b32 v%d, 0, v%d, vcc' % (d + r, t))
    def ldspoll(addr_v, target, sleep=1):
        l = lab('lp'); d = lab('lpd')
        A('s_mov_b32 s30, %d' % BOUND); A(l + ':')
        A('ds_read_b32 v28, v%d' % addr_v); A('s_waitcnt lgkmcnt(0)'); A('v_readfirstlane_b32 s31, v28')
        A('s_cmp_ge_u32 s31, %s' % target); A('s_cbranch_scc1 ' + d); A('s_sleep %d' % sleep)
        A('s_sub_u32 s30, s30, 1'); A('s_cmp_lg_u32 s30, 0'); A('s_cbranch_scc1 ' + l); A(d + ':')
    def ldsinc(addr):
        A('v_mov_b32 v29, %s' % addr); A('v_mov_b32 v28, 1'); A('s_waitcnt lgkmcnt(0)')
        A('s_mov_b64 exec, 1'); A('ds_add_u32 v29, v28'); A('s_mov_b64 exec, -1')
    def hbar(addr, target):
        ldsinc(addr); ldspoll(29, target)
    def gpoll(loads, check, sleep, body=None):
        l = lab('gp'); d = lab('gpd')
        A('s_mov_b32 s30, %d' % BOUND); A(l + ':')
        loads(); A('s_waitcnt vmcnt(0)'); check()
        if body:
            A('s_mov_b64 s[82:83], vcc'); body(); A('s_cmp_eq_u64 s[82:83], -1')
        else: A('s_cmp_eq_u64 vcc, -1')
        A('s_cbranch_scc1 ' + d); A('s_sleep %d' % sleep)
        A('s_sub_u32 s30, s30, 1'); A('s_cmp_lg_u32 s30, 0'); A('s_cbranch_scc1 ' + l); A(d + ':')
    def tagcheck(tr):
        A('v_mov_b32 v28, v%d' % tr[0]); A('v_mov_b32 v29, v%d' % tr[0]); rest = tr[1:]
        while rest:
            a = rest[0]; b = rest[1] if len(rest) > 1 else rest[0]; rest = rest[2:]
            A('v_min3_u32 v28, v28, v%d, v%d' % (a, b)); A('v_max3_u32 v29, v29, v%d, v%d' % (a, b))
        A('v_cmp_eq_u32 s[24:25], s7, v28'); A('v_cmp_eq_u32 vcc, s7, v29'); A('s_and_b64 vcc, vcc, s[24:25]')
    WB = 128; XR = 112; SEL = 8; BR = 16; DD = 24
    def wl(sr, NL=32, voff=5, r=True):
        A('s_mov_b32 s25, %s' % ('s79' if (rot and r) else '0'))
        for t in range(NL):
            A('s_add_u32 s24, s64, s25')
            A('buffer_load_dwordx4 %s, v%d, s[%d:%d], s24 offen %s' % (vr(WB + 4 * t, 4), voff, sr, sr + 3, wf))
            if t < NL - 1: A('s_add_u32 s25, s25, 8192'); A('s_and_b32 s25, s25, 0x%x' % (NL * 8192 - 1))
    def xload(NL=32):
        for k in range(NL // 8):
            A('s_add_u32 s24, %s, %d' % ('s80' if rot else '0', 16 * k)); A('s_and_b32 s24, s24, %d' % (2 * NL - 1)); A('s_add_u32 s24, s24, s27')
            A('buffer_load_dwordx4 %s, v28, s[20:23], s24 offen' % vr(XR + 4 * k, 4))
    def wload1k(sr, sig=0):
        for t in range(32):
            if sig and t == 28: A('s_waitcnt vmcnt(28)'); ldsinc(CNT + 8)
            A('buffer_load_dwordx4 %s, v6, s[%d:%d], s24 offen offset:%d %s' % (vr(WB + 4 * t, 4), sr, sr + 3, (t & 3) * 1024, wf))
            if (t & 3) == 3 and t < 31: A('s_add_u32 s24, s24, 4096')
    def gemv(NL, base=WB, after=None):
        for t in range(NL):
            if after is not None and t % 4 == 0: A('s_waitcnt vmcnt(%d)' % min(63, after + NL - t - 4))
            b = BR + 4 * (t & 1)
            for r in range(4): A('v_perm_b32 v%d, v%d, v%d, v%d' % (b + r, XR + t // 2, XR + t // 2, SEL + 4 * (t & 1) + r))
            A('v_mfma_f32_16x16x32_bf16 %s, %s, %s, %s' % (vr(DD, 4), vr(base + 4 * t, 4), vr(b, 4), '0' if t == 0 else vr(DD, 4)))
    def selinit():
        masks(BR, 28, n=1)
        A('v_mov_b32 v28, 0x0c0c0c0c'); A('s_mov_b32 s24, 0x01000100'); A('s_mov_b32 s25, 0x03020302')
        for r in range(4): A('v_bfi_b32 v%d, v%d, s24, v28' % (SEL + r, BR + r)); A('v_bfi_b32 v%d, v%d, s25, v28' % (SEL + 4 + r, BR + r))
    def d_to_lds_f32(base, wr):
        A('v_lshlrev_b32 v30, 1, v7'); A('v_lshl_add_u32 v30, v1, 2, v30'); A('s_lshl_b32 s24, %s, 10' % wr); A('s_add_u32 s24, s24, %d' % base); A('v_add_u32 v30, s24, v30')
        for r in range(4): A('ds_write_b32 v30, v%d offset:%d' % (DD + r, 32 * r))
    def zero_cnt(l):
        A('s_cmp_lg_u32 s3, 0'); A('s_cbranch_scc1 ' + l)
        A('v_mov_b32 v28, %d' % CNT); A('v_lshl_add_u32 v28, v4, 2, v28'); A('v_mov_b32 v29, 0'); A('ds_write_b32 v28, v29'); A(l + ':')
    TAGADD = 's_add_u32 s7, s7, 0x9e3779b1'

    A('s_cmp_ge_u32 s2, 256'); A('s_cbranch_scc1 L_end')
    A('s_load_dwordx16 s[32:47], s[0:1], 0'); A('s_load_dwordx8 s[48:55], s[0:1], 64'); A('s_load_dwordx4 s[56:59], s[0:1], 96'); A('s_load_dwordx2 s[60:61], s[0:1], 112')
    if stamps:
        A('s_memrealtime s[88:89]')
        for k in range(1, 10): A('s_mov_b32 s%d, 0' % (90 + k))
        A('v_mov_b32 v62, 0')
    A('v_lshrrev_b32 v1, 6, v0'); A('v_and_b32 v0, 63, v0'); A('v_readfirstlane_b32 s3, v1')
    A('v_lshlrev_b32 v2, 4, v0'); A('v_lshrrev_b32 v3, 4, v0'); A('v_and_b32 v4, 15, v0'); A('v_and_b32 v1, 7, v0')
    A('s_mov_b32 s26, %s' % SCALE); A('s_and_b32 s63, s3, 3'); A('s_mov_b32 s81, %d' % EPO)
    A('s_cmp_lt_u32 s2, 64')
    A('s_waitcnt lgkmcnt(0)')
    A('s_load_dword s7, s[60:61], s81')
    srd(16, 60, WSSZ)
    A('s_cbranch_scc1 L_bwg')

    A('s_cmp_ge_u32 s3, %d' % SW); A('s_cbranch_scc1 L_sexit')
    A('s_sub_u32 s24, s2, 64'); A('s_mul_i32 s62, s24, 43691'); A('s_lshr_b32 s62, s62, 17'); A('s_mul_i32 s25, s62, 3'); A('s_sub_u32 s6, s24, s25')
    if gmap: A('s_and_b32 s62, s24, 63'); A('s_lshr_b32 s6, s24, 6')
    if gmap >= 2: A('s_mul_i32 s25, s6, %d' % gmap); A('s_add_u32 s62, s62, s25'); A('s_and_b32 s62, s62, 63')
    A('s_mov_b32 s87, 0'); A('s_mov_b32 s85, 1')
    A('L_stream:')
    srd(8, 34, 0x8000000); srd(12, 36, 0x8000000)
    ch_ = (512 - 4 * (c0 + c1 + c2)) // 2
    assert 2 * ch_ + 4 * (c0 + c1 + c2) == 512
    A('s_mov_b32 s25, %d' % c0); A('s_mov_b32 s24, 0')
    for r_, (c_, o_) in enumerate([(c1, 4 * c0), (c2, 4 * (c0 + c1)), (ch_, 4 * (c0 + c1 + c2))]):
        A('s_cmp_eq_u32 s6, %d' % (r_ + 1)); A('s_cselect_b32 s25, %d, s25' % c_); A('s_cselect_b32 s24, %d, s24' % o_)
    A('s_mul_i32 s27, s25, s63'); A('s_add_u32 s24, s24, s27'); A('s_lshl_b32 s24, s24, 12'); A('s_lshl_b32 s25, s25, 12')
    A('s_lshl_b32 s65, s62, 21'); A('s_add_u32 s65, s65, s24'); A('s_add_u32 s66, s65, s25')
    if tik: A('s_lshl_b32 s84, s62, 8'); A('s_add_u32 s84, s84, %d' % TIK)
    if tik == 1:
        n_ = NS * (R + 2); P0 = 12 * n_ + 2 * nc + 2 * nw
        assert nc >= NS and P0 <= 512 and (nw == 0 or nw >= NS)
        A('s_lshl_b32 s24, s6, 2'); A('s_add_u32 s24, s24, s63'); A('s_mul_i32 s65, s24, %d' % (NS if il else n_)); A('s_lshl_b32 s66, s62, 21')
        A('s_mul_i32 s80, s62, %d' % trot); A('s_movk_i32 s64, 512'); A('s_mov_b32 s83, %d' % R); A('s_mov_b32 s82, %d' % (12 * NS if il else NS)); A('s_mov_b32 s27, %d' % NS)
        for role, nx, o_ in ((3, nc, 12 * n_), (4, max(nw, NS), 12 * n_ + 2 * nc)):
            A('s_mul_i32 s24, s63, %d' % nx); A('s_add_u32 s24, s24, %d' % o_)
            A('s_cmp_eq_u32 s6, %d' % role); A('s_cselect_b32 s64, 0, s64'); A('s_cselect_b32 s65, s24, s65'); A('s_cselect_b32 s83, %d, s83' % (nx // NS - 1))
            A('s_cselect_b32 s82, %d, s82' % NS); A('s_cselect_b32 s27, %d, s27' % (nx % NS))
        A('s_add_u32 s25, s83, 1'); A('s_mul_i32 s25, s25, s82'); A('s_add_u32 s25, s25, s65'); A('s_sub_u32 s82, s82, %d' % (NS - 1))
        for s_ in range(NS):
            A('v_mov_b32 v%d, s25' % (52 + s_)); A('s_cmp_gt_u32 s27, %d' % s_); A('s_cselect_b32 s%d, 0, 512' % (74 + s_)); A('s_add_u32 s25, s25, 1')
        if stamps: A('s_mov_b32 s99, 0')
    SL = 64
    def issueK(s):
        for i in range(4): A('buffer_load_dwordx4 %s, v2, s[8:11], s%d offen offset:%d %s' % (vr(SL + 32 * s + 4 * i, 4), 68 + s, 1024 * i, sf))
    def issueV(s):
        for i in range(4): A('buffer_load_dwordx4 %s, v2, s[12:15], s%d offen offset:%d %s' % (vr(SL + 32 * s + 16 + 4 * i, 4), 68 + s, 1024 * i, sf))
    def tileoff(t):
        A('s_add_u32 s25, %s, s80' % t); A('s_and_b32 s25, s25, 511'); A('s_lshl_b32 s25, s25, 12'); A('s_add_u32 s25, s25, s66')
    def tickoff(s, noat=False):
        if tik == 2:
            nextoff(s); A('s_mov_b64 exec, 1'); A('v_mov_b32 v%d, 0' % (52 + s))
        else:
            A('v_readfirstlane_b32 s24, v%d' % (52 + s)); A('s_mov_b64 exec, 1'); A('s_or_b32 s24, s24, s%d' % (74 + s))
            A('s_cmp_ge_u32 s24, s64'); A('s_cselect_b32 s%d, 512, 0' % (74 + s)); A('s_cselect_b32 s25, 0, 1'); A('v_mov_b32 v%d, s25' % (52 + s))
            tileoff('s24'); A('s_cmp_lt_u32 s24, 512'); A('s_cselect_b32 s%d, s25, 0x8000000' % (68 + s))
        if not noat: A('buffer_atomic_add v%d, off, s[16:19], s84 sc0 sc1' % (52 + s))
        A('s_mov_b64 exec, -1')
    def nextoff(s):
        if tik == 1:
            tileoff('s65'); A('s_mov_b32 s%d, s25' % (68 + s)); A('s_add_u32 s65, s65, %s' % ('s82' if s == NS - 1 else '1')); return
        A('s_cmp_lt_u32 s65, s66'); A('s_cselect_b32 s%d, s65, 0x8000000' % (68 + s)); A('s_add_u32 s65, s65, 4096')
    for s in range(NS):
        nextoff(s); issueK(s); issueV(s)
        if stg and s == stg - 1: A('s_waitcnt vmcnt(%d)' % stw)
    masks(5, 17)
    A('v_mov_b32 v19, 0xf149f2ca'); A('v_mov_b32 v24, 0')
    A('s_cmp_lt_u32 s2, 64'); A('s_cbranch_scc1 L_sq')
    zero_cnt('L_noz0')
    A('s_waitcnt lgkmcnt(0)'); A('s_barrier'); A(TAGADD)
    A('L_sq:')
    A('s_lshl_b32 s67, s62, 9'); A('s_add_u32 s67, s67, %d' % QX); A('v_lshlrev_b32 v21, 5, v4')
    def ql():
        A('buffer_load_dwordx4 v[32:35], v21, s[16:19], s67 offen sc1'); A('buffer_load_dwordx4 v[36:39], v21, s[16:19], s67 offen offset:16 sc1')
    gpoll(ql, lambda: tagcheck([33, 35, 37, 39]), qsl)
    for i in range(4): A('v_mov_b32 v%d, v%d' % (9 + i, 32 + 2 * i))
    for r in range(4): A('v_mov_b32 v%d, 0' % (28 + r))
    stamp(7)
    if sprio: A('s_setprio %d' % sprio)
    if stamps: A('s_mov_b32 m0, 12'); A('v_mov_b32 v62, 0')
    def sbody(s, dyn, mode=0, kw=None, vw=None):
        K = SL + 32 * s; Vv = K + 16
        if stamps and s == 0: A('s_memrealtime s[28:29]')
        if stamps and s == 1: A('s_waitcnt lgkmcnt(0)'); A('v_writelane_b32 v62, s28, m0'); A('s_add_u32 m0, m0, 1')
        if dyn or tik != 1: A('s_cmp_ge_u32 s%d, 0x8000000' % (68 + s)); A('s_cbranch_scc1 L_sdone')
        if stamps and tik: A('s_add_u32 s99, s99, 100')
        A('s_waitcnt vmcnt(%d)' % (kw if kw is not None else 9 * NS - 5 if tik == 2 else 8 * NS - 4))
        for j in range(4):
            for i in range(4): A('v_dot2_f32_bf16 v%d, v%d, v%d, %s' % (13 + i, K + 4 * i + j, 9 + j, '0' if j == 0 else 'v%d' % (13 + i)))
        if mode == 1: tickoff(s, True); issueK(s)
        elif mode == 0: (tickoff if dyn else nextoff)(s); issueK(s)
        allred16([13, 14, 15, 16])
        round_scale(13, 4, 17)
        A('v_max3_f32 v20, v13, v14, v19'); A('v_max3_f32 v20, v15, v16, v20')
        allred_rows(20, 21, 'v_max_f32')
        A('v_sub_f32 v22, v19, v20'); A('v_mul_f32 v23, %s, v20' % L2E); A('v_mul_f32 v22, %s, v22' % L2E); A('v_mov_b32 v19, v20'); A('v_exp_f32 v22, v22')
        A('v_mov_b32 v21, %s' % L2E)
        for i in range(4): A('v_fma_f32 v%d, v%d, v21, -v23' % (13 + i, 13 + i))
        for i in range(4): A('v_exp_f32 v%d, v%d' % (13 + i, 13 + i))
        for r in range(4): A('v_mul_f32 v%d, v22, v%d' % (28 + r, 28 + r))
        for i in range(4): A('v_cvt_pk_bf16_f32 v%d, v%d, v%d' % (48 + i, 13 + i, 13 + i))
        A('v_add_f32 v17, v13, v14'); A('v_add_f32 v18, v15, v16')
        for i in range(4):
            for r in range(4): A('v_and_b32 v%d, v%d, v%d' % (32 + 4 * i + r, 48 + i, 5 + r))
        A('v_add_f32 v17, v17, v18'); A('v_fma_f32 v24, v24, v22, v17')
        A('s_waitcnt vmcnt(%d)' % (vw if vw is not None else 9 * NS - 4 if tik == 2 else 8 * NS - 4 + dyn))
        for i in range(4): A('v_mfma_f32_16x16x32_bf16 v[28:31], %s, %s, v[28:31]' % (vr(Vv + 4 * i, 4), vr(32 + 4 * i, 4)))
        if mode != 2: issueV(s)
    if tik == 1:
        A('L_loopa:'); A('s_cmp_eq_u32 s83, 0'); A('s_cbranch_scc1 L_loop'); A('s_sub_u32 s83, s83, 1')
        for s in range(NS): sbody(s, 0)
        A('s_branch L_loopa')
    A('L_loop:')
    if M:
        assert tik == 1 and 2 <= M < NS
        for s in range(NS): sbody(s, 1) if s < M else sbody(s, 1, 1, None, 8 * NS - 4)
        for s in range(NS): sbody(s, 1) if s < M else sbody(s, 1, 2, 4 + 8 * (NS - 1 - s) + 8 * M, 8 * (NS - 1 - s) + 8 * M)
        A('L_loop2:')
        for s in range(M): sbody(s, 1, 0, 8 * M - 4, 8 * M - 3)
        A('s_branch L_loop2')
    else:
        for s in range(NS): sbody(s, 1 if tik else 0)
        A('s_branch L_loop')
    A('L_sdone:')
    stamp(8)
    allred_rows(24, 21)
    A('s_mul_i32 s27, s87, 2560'); A('s_add_u32 s27, s27, %d' % SP)
    A('v_lshlrev_b32 v21, 7, v3'); A('v_lshl_add_u32 v21, v1, 4, v21'); A('v_add_u32 v21, s27, v21')
    A('s_mul_i32 s24, s63, 640'); A('v_add_u32 v22, s24, v21'); A('s_add_u32 s24, s24, s27'); A('v_mov_b32 v23, s24'); A('v_mov_b32 v25, v24'); A('v_mov_b32 v24, v19')
    A('s_mov_b32 exec_lo, 0x00ff00ff'); A('s_mov_b32 exec_hi, 0x00ff00ff'); A('ds_write_b128 v22, v[28:31]')
    A('ds_write_b64 v23, v[24:25] offset:512')
    A('s_cmp_eq_u32 s85, 1'); A('s_cbranch_scc1 L_snn')
    for i in range(4): A('v_mov_b32 v%d, 0' % (32 + i))
    A('v_mov_b32 v36, 0xf149f2ca'); A('v_mov_b32 v37, 0'); A('ds_write_b128 v22, v[32:35] offset:1280'); A('ds_write_b64 v23, v[36:37] offset:1792')
    A('L_snn:')
    A('s_mov_b64 exec, 1'); A('s_lshl_b32 s24, s87, 2'); A('s_add_u32 s24, s24, %d' % (CNT + 32)); A('v_mov_b32 v22, s24'); A('v_mov_b32 v23, s85'); A('s_waitcnt lgkmcnt(0)')
    A('ds_add_rtn_u32 v23, v22, v23'); A('s_waitcnt lgkmcnt(0)'); A('s_mov_b64 exec, -1'); A('v_readfirstlane_b32 s24, v23')
    A('s_add_u32 s24, s24, s85'); A('s_cmp_lg_u32 s24, 4'); A('s_cbranch_scc1 L_sfin')
    A('s_add_u32 s27, s27, 512'); A('v_mov_b32 v22, s27'); A('s_waitcnt vmcnt(0)')
    for w in range(SW): A('ds_read_b64 %s, v22 offset:%d' % (vr(96 + 2 * w, 2), 640 * w))
    for w in range(SW): A('ds_read_b128 %s, v21 offset:%d' % (vr(64 + 4 * w, 4), 640 * w))
    A('s_and_b32 s24, s62, 31'); A('s_lshl_b32 s24, s24, 14'); A('s_add_u32 s24, s24, %d' % PT); A('s_lshr_b32 s25, s62, 5'); A('s_lshl_b32 s25, s25, 2'); A('s_add_u32 s25, s25, s6')
    A('s_lshr_b32 s27, s62, 5'); A('s_add_u32 s27, s27, 8'); A('s_cmp_eq_u32 s6, 4'); A('s_cselect_b32 s25, s27, s25'); A('s_cselect_b32 s30, 256, 0')
    A('s_lshl_b32 s27, s25, 4'); A('s_add_u32 s27, s27, s24'); A('s_lshl_b32 s25, s25, 8'); A('s_add_u32 s24, s24, s25'); A('s_add_u32 s24, s24, s30')
    A('v_lshlrev_b32 v44, 12, v3'); A('v_lshl_add_u32 v44, v4, 5, v44'); A('v_lshlrev_b32 v45, 12, v0')
    for i in (33, 35, 37, 39, 41, 43): A('v_mov_b32 v%d, s7' % i)
    A('s_waitcnt lgkmcnt(%d)' % SW)
    A('v_mov_b32 v40, v96')
    for w in range(1, SW): A('v_max_f32 v40, v40, v%d' % (96 + 2 * w))
    for w in range(SW): A('v_sub_f32 v%d, v%d, v40' % (96 + 2 * w, 96 + 2 * w))
    for w in range(SW): A('v_mul_f32 v%d, %s, v%d' % (96 + 2 * w, L2E, 96 + 2 * w))
    for w in range(SW): A('v_exp_f32 v%d, v%d' % (96 + 2 * w, 96 + 2 * w))
    A('v_mul_f32 v42, v96, v97')
    for w in range(1, SW): A('v_fma_f32 v42, v%d, v%d, v42' % (96 + 2 * w, 97 + 2 * w))
    A('s_waitcnt lgkmcnt(0)')
    for r in range(4): A('v_mul_f32 v%d, v96, v%d' % (32 + 2 * r, 64 + r))
    for w in range(1, SW):
        for r in range(4): A('v_fma_f32 v%d, v%d, v%d, v%d' % (32 + 2 * r, 96 + 2 * w, 64 + 4 * w + r, 32 + 2 * r))
    A('s_mov_b32 exec_lo, 0x00ff00ff'); A('s_mov_b32 exec_hi, 0x00ff00ff')
    A('buffer_store_dwordx4 v[32:35], v44, s[16:19], s24 offen sc1'); A('buffer_store_dwordx4 v[36:39], v44, s[16:19], s24 offen offset:16 sc1')
    A('s_mov_b64 exec, 15'); A('buffer_store_dwordx4 v[40:43], v45, s[16:19], s27 offen offset:2048 sc1'); A('s_mov_b64 exec, -1')
    A('L_sfin:'); A('s_cmp_eq_u32 s6, 4'); A('s_cbranch_scc1 L_setb2')
    A('s_branch L_fin')
    A('L_sexit:'); A('s_barrier')
    if pf:
        assert tik == 1 and il == 1 and gmap == 1 and trot == 0 and pf <= 2 * NS and R >= 2
        srd(8, 34, 0x8000000); srd(12, 36, 0x8000000)
        A('s_sub_u32 s24, s2, 64'); A('s_and_b32 s62, s24, 63'); A('s_lshr_b32 s6, s24, 6')
        A('s_lshl_b32 s24, s6, 2'); A('s_add_u32 s24, s24, s63'); A('s_mul_i32 s24, s24, %d' % NS); A('s_add_u32 s24, s24, %d' % (12 * NS))
        A('s_lshl_b32 s24, s24, 12'); A('s_lshl_b32 s25, s62, 21'); A('s_add_u32 s24, s24, s25'); A('v_lshlrev_b32 v5, 6, v0')
        for i in range(pfs): A('s_sleep 32')
        for i in range(pf):
            A('buffer_load_dword v%d, v5, s[8:11], s24 offen %s' % (64 + 2 * i, pfm)); A('buffer_load_dword v%d, v5, s[12:15], s24 offen %s' % (65 + 2 * i, pfm))
            A('s_add_u32 s24, s24, %d' % (4096 * (12 * NS - NS + 1) if i == NS - 1 else 4096))
        A('s_waitcnt vmcnt(0)')
    A('s_branch L_fin')

    A('L_bwg:')
    srd(20, 32, 2048)
    A('s_and_b32 s5, s2, 31'); A('s_lshl_b32 s65, s5, 8')
    A('v_lshrrev_b32 v7, 3, v4'); A('v_lshlrev_b32 v28, 10, v7'); A('v_lshlrev_b32 v7, 8, v7'); A('v_lshl_add_u32 v7, v3, 6, v7')
    A('s_lshl_b32 s86, s5, 17'); A('s_lshl_b32 s24, s63, 8'); A('s_add_u32 s86, s86, s24')
    A('s_cmp_ge_u32 s2, 32'); A('s_cbranch_scc1 L_wwg')
    srd(8, 38, 0x400000)
    A('s_lshl_b32 s64, s3, 19'); A('s_add_u32 s64, s64, s65'); A('s_lshl_b32 s27, s3, 7')
    A('v_lshlrev_b32 v5, 17, v3'); A('v_lshl_add_u32 v5, v4, 4, v5'); A('v_lshl_add_u32 v28, v3, 5, v28')
    A('s_and_b32 s80, s2, 1'); A('s_lshl_b32 s79, s80, 16'); A('s_lshl_b32 s80, s80, 4')
    if tik:
        A('s_cmp_lg_u32 s3, 0'); A('s_cbranch_scc1 L_noti')
        A('s_add_u32 s24, s65, %d' % TIK); A('v_lshlrev_b32 v29, 13, v0'); A('v_mov_b32 v30, %d' % P0); A('s_mov_b64 exec, 3')
        A('buffer_store_dword v30, v29, s[16:19], s24 offen sc0 sc1'); A('s_mov_b64 exec, -1'); A('L_noti:')
    xload(16); wl(8, 16)
    zero_cnt('L_noz1')
    selinit()
    gemv(16, after=0)
    stamp(1)
    d_to_lds_f32(QP, 's3')
    A('s_waitcnt lgkmcnt(0)'); A('s_barrier'); A(TAGADD)
    A('s_cmp_lg_u32 s3, 0'); A('s_cbranch_scc1 L_cq')
    A('v_add_u32 v30, %d, v2' % QP)
    for w in range(8): A('ds_read_b128 %s, v30 offset:%d' % (vr(32 + 4 * w, 4), 1024 * w))
    A('v_lshrrev_b32 v30, 5, v0'); A('v_lshlrev_b32 v30, 14, v30'); A('v_and_b32 v31, 31, v0'); A('v_lshl_add_u32 v30, v31, 4, v30')
    A('s_lshl_b32 s24, s5, 9'); A('s_add_u32 s24, s24, %d' % QX)
    A('s_waitcnt lgkmcnt(0)')
    for n in (16, 8, 4):
        for i in range(n): A('v_add_f32 v%d, v%d, v%d' % (32 + i, 32 + i, 32 + n + i))
    A('v_cvt_pk_bf16_f32 v32, v32, v33'); A('v_cvt_pk_bf16_f32 v34, v34, v35'); A('v_mov_b32 v33, s7'); A('v_mov_b32 v35, s7')
    A('buffer_store_dwordx4 v[32:35], v30, s[16:19], s24 offen sc1')
    A('L_cq:'); A('s_barrier')
    stamp(2)
    A('s_lshr_b32 s87, s63, 1'); A('s_lshl_b32 s62, s87, 5'); A('s_add_u32 s62, s62, s5'); A('s_mov_b32 s6, 3'); A('s_mov_b32 s85, 2')
    A('s_cmp_lt_u32 s3, 4'); A('s_cbranch_scc1 L_b2in'); A('s_and_b32 s63, s63, 1'); A('s_branch L_stream')
    A('L_b2in:')
    if nob == 1: A('s_branch L_fin')
    A('s_setprio %d' % cprio)
    srd(8, 44, 0x1000000)
    A('s_lshr_b32 s4, s2, 5'); A('s_mov_b32 s67, s2')
    A('s_lshl_b32 s76, s2, 18'); A('s_lshl_b32 s24, s63, 14'); A('s_add_u32 s76, s76, s24')
    A('s_mov_b32 s77, %d' % CBUF); A('s_mul_i32 s78, s63, %d' % (16 * PITCH))
    def dma():
        A('s_mov_b32 m0, s78'); A('s_mov_b32 s24, s76')
        for r in range(16):
            A('buffer_load_dwordx4 v2, s[8:11], s24 offen offset:%d nt lds' % ((r & 3) * 1024))
            if r < 15:
                A('s_add_u32 m0, m0, %d' % (PITCH - 1024 if (r & 3) != 3 else PITCH + 3072))
                if (r & 3) == 3: A('s_add_u32 s24, s24, 4096')
        A('s_add_u32 s76, s76, 65536')
    dma()
    if not dord: A('s_add_u32 s78, s78, %d' % CBUF); dma(); A('s_sub_u32 s78, s78, %d' % CBUF)
    A('s_and_b32 s68, s63, 1'); A('s_lshr_b32 s69, s63, 1'); A('s_lshl_b32 s70, s68, 4')
    A('s_lshl_b32 s71, s68, 8'); A('s_add_u32 s71, s71, %d' % QAF); A('v_lshlrev_b32 v30, 4, v4')
    for i in range(64): A('v_mov_b32 v%d, 0' % (64 + i))
    A('v_mov_b32 v34, 0xf149f2ca'); A('v_mov_b32 v38, 0')
    gpoll(lambda: A('buffer_load_dwordx4 v[40:43], v30, s[16:19], s71 offen sc1'), lambda: tagcheck([40, 41, 42, 43]), 8)
    A('v_lshlrev_b32 v30, 10, v4'); A('v_lshl_add_u32 v30, v3, 4, v30'); A('s_lshl_b32 s24, s4, 5'); A('s_add_u32 s24, s24, s70'); A('s_lshl_b32 s24, s24, 10'); A('s_add_u32 s24, s24, %d' % QA)
    for ks in range(16): A('buffer_load_dwordx4 %s, v30, s[16:19], s24 offen offset:%d sc1' % (vr(128 + 4 * ks, 4), 64 * ks))
    if dord: A('s_add_u32 s78, s78, %d' % CBUF); dma(); A('s_sub_u32 s78, s78, %d' % CBUF)
    A('v_mul_u32_u24 v32, %d, v4' % PITCH); A('v_lshl_add_u32 v32, v3, 4, v32')
    A('v_lshrrev_b32 v39, 2, v4'); A('v_lshl_add_u32 v39, v3, 2, v39'); A('v_mul_u32_u24 v39, %d, v39' % PITCH); A('v_and_b32 v33, 3, v4'); A('v_lshl_add_u32 v39, v33, 4, v39')
    A('s_lshl_b32 s24, s69, 9'); A('v_add_u32 v39, s24, v39')
    A('s_mov_b32 s74, 4'); A('s_mov_b32 s75, 0'); A('s_waitcnt vmcnt(%d)' % (16 if dord else 0))
    stamp(3)
    A('L_b2:')
    A('s_waitcnt vmcnt(16)'); A('s_cmp_lg_u32 s74, 1'); A('s_cbranch_scc1 L_b2w'); A('s_waitcnt vmcnt(0)'); A('L_b2w:')
    A('s_add_u32 s75, s75, 4'); hbar(CNT, 's75')
    groups = [(T, kq) for T in range(4) for kq in range(4)]
    def rdS(gi):
        T, kq = groups[gi]
        for i in range(4): A('ds_read_b128 %s, v32 offset:%d' % (vr(192 + 16 * (gi % 3) + 4 * i, 4), T * 16 * PITCH + 64 * (4 * kq + i)))
    rdS(0); rdS(1)
    for gi, (T, kq) in enumerate(groups):
        if gi + 2 < len(groups): rdS(gi + 2)
        A('s_waitcnt lgkmcnt(%d)' % (4 * min(2, len(groups) - 1 - gi)))
        for i in range(4):
            ks = 4 * kq + i
            A('v_mfma_f32_16x16x32_bf16 %s, %s, %s, %s' % (vr(48 + 4 * T, 4), vr(192 + 16 * (gi % 3) + 4 * i, 4), vr(128 + 4 * ks, 4), '0' if ks == 0 else vr(48 + 4 * T, 4)))
    g2 = [(P, up) for P in range(8) for up in range(2)]
    def rdP(gi):
        P, up = g2[gi]
        for i in range(4): A('ds_read_b64_tr_b16 %s, v39 offset:%d' % (vr(192 + 8 * (gi % 3) + 2 * i, 2), i * 16 * PITCH + 64 * P + 8 * up))
    rdP(0); rdP(1)
    round_scale(48, 16, 40)
    A('v_max3_f32 v35, v48, v49, v34')
    for i in range(50, 64, 2): A('v_max3_f32 v35, v35, v%d, v%d' % (i, i + 1))
    allred_rows(35, 36, 'v_max_f32')
    A('v_sub_f32 v37, v34, v35'); A('v_mul_f32 v37, %s, v37' % L2E); A('v_exp_f32 v37, v37'); A('v_mov_b32 v34, v35')
    A('v_mul_f32 v35, %s, v35' % L2E); A('v_mov_b32 v36, %s' % L2E)
    for i in range(16): A('v_fma_f32 v%d, v%d, v36, -v35' % (48 + i, 48 + i))
    for i in range(16): A('v_exp_f32 v%d, v%d' % (48 + i, 48 + i))
    for i in range(64): A('v_mul_f32 v%d, v37, v%d' % (64 + i, 64 + i))
    for i in range(8): A('v_cvt_pk_bf16_f32 v%d, v%d, v%d' % (40 + i, 48 + 2 * i, 49 + 2 * i))
    for n in (8, 4, 2, 1):
        for i in range(n): A('v_add_f32 v%d, v%d, v%d' % (48 + i, 48 + i, 48 + n + i))
    A('v_fma_f32 v38, v38, v37, v48')
    for gi, (P, up) in enumerate(g2):
        if gi + 2 < len(g2): rdP(gi + 2)
        A('s_waitcnt lgkmcnt(%d)' % (4 * min(2, len(g2) - 1 - gi)))
        acc = 64 + 8 * P + 4 * up
        for u in range(2): A('v_mfma_f32_16x16x32_bf16 %s, %s, %s, %s' % (vr(acc, 4), vr(192 + 8 * (gi % 3) + 4 * u, 4), vr(40 + 4 * u, 4), vr(acc, 4)))
    A('s_sub_u32 s74, s74, 1'); A('s_cmp_eq_u32 s74, 0'); A('s_cbranch_scc1 L_b2e')
    A('v_add_u32 v32, s77, v32'); A('v_add_u32 v39, s77, v39')
    A('s_cmp_eq_u32 s74, 1'); A('s_cbranch_scc1 L_b2')
    A('s_add_u32 s75, s75, 4'); hbar(CNT, 's75')
    dma()
    A('s_add_u32 s78, s78, s77'); A('s_sub_u32 s77, 0, s77')
    A('s_branch L_b2')
    A('L_b2e:')
    allred_rows(38, 36)
    A('v_lshlrev_b32 v36, 16, v4'); A('v_lshl_add_u32 v36, v3, 4, v36')
    A('s_lshl_b32 s72, s70, 16'); A('s_lshl_b32 s24, s69, 15'); A('s_add_u32 s72, s72, s24'); A('s_lshl_b32 s24, s67, 8'); A('s_add_u32 s72, s72, s24'); A('s_add_u32 s72, s72, %d' % CLP); A('s_add_u32 s73, s72, 16384')
    for P in range(8):
        for i in range(4): A('v_cvt_pk_bf16_f32 v%d, v%d, v%d' % (192 + 4 * P + i, 64 + 8 * P + 2 * i, 65 + 8 * P + 2 * i))
        A('buffer_store_dwordx4 %s, v36, s[16:19], s%d offen offset:%d sc1' % (vr(192 + 4 * P, 4), 72 + (P >> 2), 64 * (P & 3)))
    A('v_mov_b32 v40, v34'); A('v_mov_b32 v41, s7'); A('v_mov_b32 v42, v38'); A('v_mov_b32 v43, s7'); A('v_lshlrev_b32 v36, 11, v4')
    A('s_lshl_b32 s24, s70, 11'); A('s_lshl_b32 s25, s69, 10'); A('s_add_u32 s24, s24, s25'); A('s_lshl_b32 s25, s67, 4'); A('s_add_u32 s24, s24, s25'); A('s_add_u32 s24, s24, %d' % CLF)
    A('s_mov_b64 exec, 0xffff'); A('s_waitcnt vmcnt(0)')
    A('buffer_store_dwordx4 v[40:43], v36, s[16:19], s24 offen sc1'); A('s_mov_b64 exec, -1')
    stamp(4)
    A('s_branch L_tail')

    A('L_wwg:')
    A('s_lshl_b32 s64, s63, 20'); A('s_add_u32 s64, s64, s65'); A('s_lshl_b32 s27, s63, 8')
    A('v_lshlrev_b32 v5, 18, v3'); A('v_lshl_add_u32 v5, v4, 4, v5'); A('v_lshl_add_u32 v28, v3, 6, v28')
    def wregs():
        A('v_lshlrev_b32 v6, 15, v3'); A('v_lshl_add_u32 v6, v4, 4, v6')
        A('v_lshrrev_b32 v47, 3, v4'); A('v_lshlrev_b32 v7, 8, v47'); A('v_lshl_add_u32 v7, v3, 6, v7')
        A('v_lshlrev_b32 v47, 7, v47'); A('v_lshl_add_u32 v47, v1, 4, v47'); A('v_lshl_add_u32 v47, v3, 14, v47')
        A('s_lshl_b32 s77, s63, 16'); A('s_add_u32 s77, s77, s65'); A('s_add_u32 s77, s77, %d' % YY)
    wregs()
    A('s_and_b32 s80, s2, 3'); A('s_lshl_b32 s79, s80, 16'); A('s_lshl_b32 s80, s80, 4')
    A('s_cmp_ge_u32 s3, 4'); A('s_cbranch_scc1 L_setb')
    srd(8, 46, 0x400000)
    A('s_setprio 3')
    xload(); wl(8)
    zero_cnt('L_noz2')
    selinit()
    gemv(32, after=0)
    stamp(1)
    d_to_lds_f32(QP, 's63')
    A('s_waitcnt lgkmcnt(0)'); A('s_barrier'); A(TAGADD)
    A('s_setprio 0')
    if wqa: A('v_mov_b32 v29, %d' % (CNT + 24)); ldspoll(29, 4, 4)
    A('s_branch L_b2in')
    A('L_tail:')
    wregs()
    A('s_cmp_lt_u32 s2, 32'); A('s_cselect_b32 s12, s40, s52'); A('s_cselect_b32 s13, s41, s53'); A('s_mov_b32 s14, 0x400000'); A('s_mov_b32 s15, 0x20000')
    A('s_mov_b32 s24, s86'); wload1k(12)
    selinit()
    A('s_cmp_lt_u32 s2, 32'); A('s_cbranch_scc1 L_ctail')
    A('v_mov_b32 v29, %d' % (CNT + 12)); ldspoll(29, 4, 2)
    A('v_lshlrev_b32 v30, 1, v7'); A('v_add_u32 v30, %d, v30' % CTXP)
    for w in range(4):
        for k in range(8): A('ds_read_b128 %s, v30 offset:%d' % (vr((48, 80, 80, 80)[w] + 4 * k, 4), 1024 * w + 16 * k))
        if w >= 1:
            A('s_waitcnt lgkmcnt(0)')
            for i in range(32): A('v_add_f32 v%d, v%d, v%d' % (48 + i, 48 + i, 80 + i))
    for i in range(16): A('v_cvt_pk_bf16_f32 v%d, v%d, v%d' % (XR + i, 48 + 2 * i, 49 + 2 * i))
    stamp(5)
    A('s_branch L_gpub')
    A('L_ctail:')
    A('s_add_u32 s77, s77, %d' % YPH)
    A('s_lshl_b32 s71, s5, 14'); A('s_lshl_b32 s24, s63, 12'); A('s_add_u32 s71, s71, s24'); A('s_add_u32 s71, s71, %d' % PT)
    A('v_lshlrev_b32 v46, 4, v3')
    A('v_and_b32 v44, 1, v4'); A('v_lshlrev_b32 v44, 5, v44'); A('v_and_b32 v43, 14, v4'); A('v_add_u32 v44, v44, v43'); A('s_lshl_b32 s24, s63, 6'); A('s_add_u32 s24, s24, %d' % XA); A('v_add_u32 v44, s24, v44')
    if nw:
        A('v_lshlrev_b32 v45, 4, v4')
        def p5l():
            for b in range(2):
                A('buffer_load_dwordx4 %s, v45, s[16:19], s71 offen offset:%d sc1' % (vr(64 + 8 * b, 4), 2304 + 256 * b)); A('buffer_load_dwordx4 %s, off, s[16:19], s71 offset:%d sc1' % (vr(68 + 8 * b, 4), 2176 + 16 * b))
        gpoll(p5l, lambda: tagcheck(list(range(65, 80, 2))), 16)
    def ptl():
        for b in range(2):
            A('buffer_load_dwordx4 %s, v2, s[16:19], s71 offen offset:%d sc1' % (vr(48 + 8 * b, 4), 1024 * b)); A('buffer_load_dwordx4 %s, v46, s[16:19], s71 offen offset:%d sc1' % (vr(52 + 8 * b, 4), 2048 + 64 * b))
    def ptbody():
        for b in range(2):
            d0 = 48 + 8 * b; d1 = d0 + 2; m = d0 + 4; l = d0 + 6; M = d0 + 1; t = d0 + 3
            A('v_mov_b32 v%d, v%d' % (M, m)); allred_rows(M, t, 'v_max_f32')
            if nw:
                e5 = 80 + b
                A('v_max_f32 v%d, v%d, v%d' % (M, M, 68 + 8 * b)); A('v_sub_f32 v%d, v%d, v%d' % (e5, 68 + 8 * b, M)); A('v_mul_f32 v%d, %s, v%d' % (e5, L2E, e5)); A('v_exp_f32 v%d, v%d' % (e5, e5))
            A('v_sub_f32 v%d, v%d, v%d' % (m, m, M)); A('v_mul_f32 v%d, %s, v%d' % (m, L2E, m)); A('v_exp_f32 v%d, v%d' % (m, m))
            for x in (l, d0, d1): A('v_mul_f32 v%d, v%d, v%d' % (x, m, x))
            for x in (l, d0, d1): allred_rows(x, t)
            if nw:
                for x, y in ((l, 70), (d0, 64), (d1, 66)): A('v_fma_f32 v%d, v%d, v%d, v%d' % (x, e5, y + 8 * b, x))
            A('v_rcp_f32 v%d, v%d' % (l, l)); A('v_mul_f32 v%d, v%d, v%d' % (d0, l, d0)); A('v_mul_f32 v%d, v%d, v%d' % (d1, l, d1))
            A('v_cvt_pk_bf16_f32 v%d, v%d, v%d' % (d0, d0, d1))
            A('ds_write_b16 v44, v%d offset:%d' % (d0, 256 * b)); A('ds_write_b16_d16_hi v44, v%d offset:%d' % (d0, 256 * b + 16))
    if gate:
        for c_ in (32, 36): A('v_mov_b32 v29, %d' % (CNT + c_)); ldspoll(29, 4, 3)
    gpoll(ptl, lambda: tagcheck(list(range(49, 64, 2))), ptsl, body=ptbody)
    stamp(5)
    hbar(CNT + 16, 4)
    A('v_add_u32 v30, %d, v7' % XA)
    for k in range(4): A('ds_read_b128 %s, v30 offset:%d' % (vr(XR + 4 * k, 4), 16 * k))
    A('s_waitcnt lgkmcnt(0)')
    A('L_gpub:')
    gemv(32, after=0)
    for r in range(4): A('v_mov_b32 v%d, s7' % (33 + 2 * r))
    for r in range(4): A('v_mov_b32 v%d, v%d' % (32 + 2 * r, DD + r))
    A('s_add_u32 s78, s77, 8192')
    A('buffer_store_dwordx4 v[32:35], v47, s[16:19], s77 offen sc1'); A('buffer_store_dwordx4 v[36:39], v47, s[16:19], s78 offen sc1')
    A('s_cmp_lg_u32 s3, 0'); A('s_cbranch_scc1 L_fin6')
    ldsinc(CNT + 20)
    A('L_fin6:')
    stamp(6)
    A('s_branch L_fin')
    A('L_setb:')
    srd(8, 48, 0x400000)
    A('s_setprio %d' % min(bprio, 2))
    wl(8, r=False)
    selinit()
    A('s_waitcnt lgkmcnt(0)'); A('s_barrier'); A(TAGADD)
    A('v_lshlrev_b32 v30, 5, v4'); A('v_add_u32 v30, %d, v30' % QP)
    for b in range(2):
        for w in range(4):
            for k in range(2): A('ds_read_b128 %s, v30 offset:%d' % (vr(48 + 32 * b + 8 * w + 4 * k, 4), 1024 * w + 512 * b + 16 * k))
    A('s_waitcnt lgkmcnt(0)')
    for b in range(2):
        t0 = 48 + 32 * b
        for i in range(8):
            A('v_add_f32 v%d, v%d, v%d' % (t0 + i, t0 + i, t0 + 8 + i)); A('v_add_f32 v%d, v%d, v%d' % (t0 + 16 + i, t0 + 16 + i, t0 + 24 + i))
        for i in range(8): A('v_add_f32 v%d, v%d, v%d' % (t0 + i, t0 + i, t0 + 16 + i))
        for i in range(4): A('v_cvt_pk_bf16_f32 v%d, v%d, v%d' % (32 + 4 * b + i, t0 + 2 * i, t0 + 2 * i + 1))
    stamp(1)
    A('s_lshl_b32 s24, s5, 10'); A('s_add_u32 s24, s24, s27'); A('s_add_u32 s72, s24, %d' % QA); A('s_add_u32 s73, s72, 32768'); A('v_lshlrev_b32 v31, 6, v3')
    for t8 in range(4):
        if t8 == 0: A('s_waitcnt vmcnt(0)')
        for b in range(2):
            for j in range(4):
                for t in range(8): A('v_dot2_f32_bf16 v%d, v%d, v%d, %s' % (48 + 8 * b + t, WB + 4 * (8 * t8 + t) + j, 32 + 4 * b + j, '0' if j == 0 else 'v%d' % (48 + 8 * b + t)))
        allred16(list(range(48, 64)))
        for i in range(8): A('v_cvt_pk_bf16_f32 v%d, v%d, v%d' % (64 + 8 * t8 + i, 48 + 2 * i, 49 + 2 * i))
        A('s_mov_b32 exec_lo, 0x00010001'); A('s_mov_b32 exec_hi, 0x00010001')
        for b in range(2): A('buffer_store_dwordx4 %s, v31, s[16:19], s%d offen offset:%d sc1' % (vr(64 + 8 * t8 + 4 * b, 4), 72 + b, 16 * t8))
        A('s_mov_b64 exec, -1')
    A('s_lshl_b32 s24, s5, 4'); A('s_lshl_b32 s25, s63, 2'); A('s_add_u32 s24, s24, s25'); A('s_add_u32 s24, s24, %d' % QAF)
    A('v_mov_b32 v28, s7'); A('s_mov_b64 exec, 1'); A('s_waitcnt vmcnt(0)')
    A('buffer_store_dword v28, off, s[16:19], s24 sc1'); A('s_mov_b64 exec, -1')
    ldsinc(CNT + 24)
    stamp(2)
    if nob == 1: A('s_branch L_fin')
    A('s_setprio %d' % bprio)
    if uvg: A('v_mov_b32 v29, %d' % CNT); ldspoll(29, uvg, 16)
    elif uvsl: A('s_sleep %d' % uvsl)
    if nw:
        A('s_setprio 0')
        A('s_lshr_b32 s87, s63, 1'); A('s_lshl_b32 s62, s87, 5'); A('s_add_u32 s62, s62, s5'); A('s_mov_b32 s6, 4'); A('s_mov_b32 s85, 2'); A('s_and_b32 s63, s63, 1'); A('s_branch L_stream')
    A('L_setb2:')
    if nw:
        A('s_setprio %d' % bprio); A('s_waitcnt vmcnt(0)')
        A('s_and_b32 s63, s3, 3'); A('s_lshl_b32 s65, s5, 8'); A('s_lshl_b32 s64, s63, 20'); A('s_add_u32 s64, s64, s65')
        A('v_lshlrev_b32 v5, 18, v3'); A('v_lshl_add_u32 v5, v4, 4, v5')
        wregs()
    srd(8, 50, 0x400000)
    wl(8, r=False)
    if nw: selinit()
    A('s_lshl_b32 s71, s5, 11'); A('s_lshr_b32 s24, s63, 1'); A('s_lshl_b32 s24, s24, 10'); A('s_add_u32 s71, s71, s24'); A('s_add_u32 s71, s71, %d' % CLF)
    if gate: A('v_mov_b32 v29, %d' % CNT); ldspoll(29, 24, 16)
    gpoll(lambda: A('buffer_load_dwordx4 v[32:35], v2, s[16:19], s71 offen sc1'), lambda: tagcheck([33, 35]), 8 if gate else 16)
    stamp(3)
    A('v_lshlrev_b32 v30, 12, v3'); A('v_lshl_add_u32 v30, v4, 4, v30')
    A('s_lshl_b32 s24, s5, 2'); A('s_add_u32 s24, s24, s63'); A('s_lshl_b32 s24, s24, 14'); A('s_add_u32 s24, s24, %d' % CLP)
    for t in range(16): A('buffer_load_dwordx4 %s, v30, s[16:19], s24 offen offset:%d sc1' % (vr(48 + 4 * t, 4), 256 * t))
    A('v_mov_b32 v36, v32'); allred16([36], 'v_max_f32'); allred_rows(36, 37, 'v_max_f32', (16,))
    A('v_sub_f32 v32, v32, v36'); A('v_mul_f32 v32, %s, v32' % L2E); A('v_exp_f32 v32, v32'); A('v_mul_f32 v36, v32, v34')
    allred16([36]); allred_rows(36, 37, 'v_add_f32', (16,))
    A('v_rcp_f32 v36, v36'); A('v_mul_f32 v32, v32, v36'); A('v_cvt_pk_bf16_f32 v32, v32, v32')
    A('s_lshl_b32 s24, s3, 9'); A('s_add_u32 s74, s24, %d' % XB)
    A('v_lshlrev_b32 v30, 1, v0'); A('v_add_u32 v30, s74, v30'); A('ds_write_b16 v30, v32'); A('v_lshlrev_b32 v30, 5, v3'); A('v_add_u32 v30, s74, v30'); A('s_waitcnt lgkmcnt(0)')
    for k in range(2): A('ds_read_b128 %s, v30 offset:%d' % (vr(XR + 4 * k, 4), 16 * k))
    A('v_lshrrev_b32 v30, 3, v4'); A('v_lshrrev_b32 v31, 1, v3'); A('v_cmp_eq_u32 vcc, v30, v31')
    A('s_waitcnt lgkmcnt(0)')
    for i in range(8): A('v_cndmask_b32 v%d, 0, v%d, vcc' % (XR + i, XR + i))
    gemv(16, base=48, after=0)
    A('v_cvt_pk_bf16_f32 v28, v%d, v%d' % (DD, DD + 1)); A('v_cvt_pk_bf16_f32 v29, v%d, v%d' % (DD + 2, DD + 3))
    A('v_add_u32 v30, s74, v7'); A('v_lshl_add_u32 v31, v1, 1, v30')
    A('ds_write_b16 v31, v28'); A('ds_write_b16_d16_hi v31, v28 offset:16'); A('ds_write_b16 v31, v29 offset:32'); A('ds_write_b16_d16_hi v31, v29 offset:48')
    A('s_waitcnt lgkmcnt(0)')
    for k in range(4): A('ds_read_b128 %s, v30 offset:%d' % (vr(XR + 4 * k, 4), 16 * k))
    A('s_waitcnt lgkmcnt(0)')
    gemv(32)
    d_to_lds_f32(CTXP, 's63')
    ldsinc(CNT + 12)
    stamp(4)
    A('s_cmp_lg_u32 s3, 4'); A('s_cbranch_scc1 L_fin')
    A('L_final:')
    srd(8, 54, 1024)
    A('buffer_load_dwordx4 v[32:35], v2, s[20:23], 0 offen'); A('buffer_load_dwordx4 v[36:39], v2, s[20:23], 0 offen offset:1024'); A('buffer_load_dwordx4 v[40:43], v2, s[8:11], 0 offen')
    A('s_lshl_b32 s77, s5, 13'); A('s_add_u32 s77, s77, %d' % YY); A('s_add_u32 s78, s77, 4096'); A('s_mov_b32 s75, 0'); A('v_mov_b32 v44, %d' % (CNT + 20))
    A('s_waitcnt vmcnt(0)')
    for i in range(4): A('v_lshlrev_b32 v%d, 16, v%d' % (64 + 2 * i, 40 + i)); A('v_and_b32 v%d, 0xffff0000, v%d' % (65 + 2 * i, 40 + i))
    for b in range(2):
        s0 = 48 + 8 * b
        for i in range(4): A('v_lshlrev_b32 v%d, 16, v%d' % (s0 + 2 * i, 32 + 4 * b + i)); A('v_and_b32 v%d, 0xffff0000, v%d' % (s0 + 1 + 2 * i, 32 + 4 * b + i))
        for i in range(8): A('v_mul_f32 v%d, v%d, v%d' % (s0 + i, s0 + i, 64 + i))
        for i in range(4): A('v_cvt_pk_bf16_f32 v%d, v%d, v%d' % (72 + i, s0 + 2 * i, s0 + 1 + 2 * i))
        for i in range(4): A('v_lshlrev_b32 v%d, 16, v%d' % (s0 + 2 * i, 72 + i)); A('v_and_b32 v%d, 0xffff0000, v%d' % (s0 + 1 + 2 * i, 72 + i))
        for n in (4, 2, 1):
            for i in range(n): A('v_add_f32 v%d, v%d, v%d' % (s0 + i, s0 + i, s0 + n + i))
        allred16([s0]); allred_rows(s0, s0 + 1)
    A('v_and_b32 v28, 8, v0'); A('v_cmp_eq_u32 vcc, 0, v28'); A('v_cndmask_b32 v48, v56, v48, vcc')
    A('v_cvt_pk_bf16_f32 v48, v48, v48'); A('v_lshlrev_b32 v48, 16, v48'); A('v_mul_f32 v48, 0xbfb8aa3b, v48'); A('v_exp_f32 v48, v48'); A('v_add_f32 v48, 1.0, v48'); A('v_rcp_f32 v48, v48')
    A('v_cvt_pk_bf16_f32 v48, v48, v48'); A('v_lshlrev_b32 v40, 16, v48'); A('v_sub_f32 v41, 1.0, v40'); A('v_cvt_pk_bf16_f32 v41, v41, v41'); A('v_lshlrev_b32 v41, 16, v41')
    A('L_fph:')
    ldspoll(44, 1, 4)
    def yl():
        for k in range(8): A('buffer_load_dwordx4 %s, v2, s[16:19], s%d offen offset:%d sc1' % (vr(48 + 4 * k, 4), 77 + (k >> 2), 1024 * (k & 3)))
    gpoll(yl, lambda: tagcheck(list(range(49, 80, 2))), ysl)
    for n in (16, 8, 4):
        for i in range(0, n, 2): A('v_add_f32 v%d, v%d, v%d' % (48 + i, 48 + i, 48 + n + i))
    allred_rows(48, 36); allred_rows(50, 36)
    A('v_cvt_pk_bf16_f32 v32, v48, v50'); A('v_and_b32 v33, 0xffff0000, v32'); A('v_lshlrev_b32 v32, 16, v32')
    A('v_mul_f32 v32, v41, v32'); A('v_mul_f32 v33, v41, v33'); A('v_cvt_pk_bf16_f32 v32, v32, v33'); A('v_and_b32 v33, 0xffff0000, v32'); A('v_lshlrev_b32 v32, 16, v32')
    A('s_cmp_lg_u32 s75, 0'); A('s_cbranch_scc1 L_fout')
    stamp(5)
    A('v_mov_b32 v42, v32'); A('v_mov_b32 v43, v33'); A('v_mov_b32 v41, v40'); A('v_mov_b32 v44, %d' % (CNT + 20)); A('s_mov_b32 s75, 1'); A('s_add_u32 s77, s77, %d' % YPH); A('s_add_u32 s78, s78, %d' % YPH); A('s_branch L_fph')
    A('L_fout:')
    A('v_add_f32 v32, v32, v42'); A('v_add_f32 v33, v33, v43'); A('v_cvt_pk_bf16_f32 v32, v32, v33')
    srd(8, 56, 2048)
    A('s_lshl_b32 s24, s5, 5'); A('v_lshrrev_b32 v33, 3, v4'); A('v_lshlrev_b32 v33, 10, v33'); A('v_lshl_add_u32 v33, v1, 1, v33')
    A('s_mov_b64 exec, 0xffff'); A('buffer_store_short v32, v33, s[8:11], s24 offen'); A('buffer_store_short_d16_hi v32, v33, s[8:11], s24 offen offset:16')
    A('s_cmp_lg_u32 s5, 0'); A('s_cbranch_scc1 L_fe')
    A('s_mov_b64 exec, 1'); A('s_sub_u32 s24, s7, 0x9e3779b0'); A('v_mov_b32 v1, s24'); A('buffer_store_dword v1, off, s[16:19], s81 sc0 sc1')
    A('L_fe:'); A('s_mov_b64 exec, -1')
    stamp(6)
    A('L_fin:')
    if stamps:
        A('s_memrealtime s[28:29]'); A('s_getreg_b32 s24, hwreg(HW_REG_XCC_ID)'); A('s_mov_b64 exec, -1'); A('s_waitcnt lgkmcnt(0)')
        A('v_mov_b32 v4, s88'); A('v_mov_b32 v5, s89'); A('v_mov_b32 v6, s28'); A('v_mov_b32 v7, s24'); A('v_mov_b32 v8, 0'); A('v_mov_b32 v9, v62')
        for k in range(1, 10): A('v_writelane_b32 v9, s%d, %d' % (90 + k, k))
        A('v_writelane_b32 v9, s28, 10')
        A('s_lshl_b32 s25, s2, 3'); A('s_add_u32 s25, s25, s3'); A('s_lshl_b32 s25, s25, 4'); A('s_lshl_b32 s24, s25, 4'); A('s_add_u32 s24, s24, 0x40000'); A('v_lshlrev_b32 v10, 2, v0')
        A('buffer_store_dword v9, v10, s[16:19], s24 offen'); A('s_mov_b64 exec, 1'); A('buffer_store_dwordx4 v[4:7], v8, s[16:19], s25 offen')
    A('L_end:')
    body = fix(L)
    H = ['; generated by work/gen3.py', '; @launch grid=(256,1,1) block=(512,1,1) lds=%d' % LDSSZ,
         '.amdgcn_target "amdgcn-amd-amdhsa--gfx950"', '.text', '.globl %s_kernel' % KN, '.p2align 8', '.type %s_kernel,@function' % KN, '%s_kernel:' % KN]
    T = ['s_endpgm', '.section .rodata,"a"', '.p2align 6', '.amdhsa_kernel %s_kernel' % KN, '  .amdhsa_next_free_vgpr 256', '  .amdhsa_next_free_sgpr 102', '  .amdhsa_accum_offset 256',
         '  .amdhsa_group_segment_fixed_size 0', '  .amdhsa_kernarg_size 120', '  .amdhsa_user_sgpr_count 2', '  .amdhsa_user_sgpr_kernarg_segment_ptr 1', '  .amdhsa_system_sgpr_workgroup_id_x 1', '.end_amdhsa_kernel']
    return '\n'.join(H + [('' if l.endswith(':') else '  ') + l for l in body] + T) + '\n'
if __name__ == '__main__':
    out = sys.argv[1]; kw = {}
    for a in sys.argv[2:]:
        k, v = a.split('='); kw[k] = int(v) if v.lstrip('-').isdigit() else v
    open(out, 'w').write(gen(**kw))
```
